```python
import torch

def _softmax(x, axis=-1):
    return torch.softmax(x, dim=axis)
def _gelu(x):
    return torch.nn.functional.gelu(x, approximate="tanh")
def _silu(x):
    return torch.nn.functional.silu(x)
def _sigmoid(x):
    return torch.sigmoid(x)
def _layernorm(x, axis=-1, eps=1e-5):
    m = x.mean(dim=axis, keepdim=True)
    v = x.var(dim=axis, keepdim=True, unbiased=False)
    return (x - m) / torch.sqrt(v + eps)
def _scatter_add(tgt, idx, src, axis=0):
    return tgt.clone().index_add_(axis, idx, src)
def _segment_sum(src, seg, n):
    out = torch.zeros((n,) + src.shape[1:], dtype=src.dtype)
    return out.index_add_(0, seg, src)
def _pad(x, pw):
    flat = tuple(v for pair in reversed(pw) for v in pair)
    return torch.nn.functional.pad(x, flat)

kernel_name = 'concat_heads__gqa_block_cached__sliding_block_cached__decode'

def setup_inputs():

    _w = (lambda a: (lambda t: t.to(torch.bfloat16) if t.is_floating_point() else t)(torch.as_tensor(a)))
    def _A_setup():
        B, Sq, D = 1, 1, 512
        Hq, Hkv, Sk, Dh = 32, 8, 65536, 128
        assert Hq % Hkv == 0, (Hq, Hkv)
        return {
            "x": _w((lambda *s: torch.randn(*s, dtype=torch.bfloat16) * 0.4)(B, Sq, D)),
            "k_cache": _w((lambda *s: torch.randn(*s, dtype=torch.bfloat16) * 3.2)(B, Hkv, Sk, Dh)),
            "v_cache": _w((lambda *s: torch.randn(*s, dtype=torch.bfloat16) * 0.8)(B, Hkv, Sk, Dh)),
            "wq": _w((lambda *s: torch.randn(*s, dtype=torch.bfloat16) * 3.2)(D, Hq * Dh) * (D ** -0.5)),
            "wo": _w((lambda *s: torch.randn(*s, dtype=torch.bfloat16) * 0.8)(Hq * Dh, D) * ((Hq * Dh) ** -0.5)),
        }
    _A_in = _A_setup()

    def _B_setup():
        B, Sq, D = 1, 1, 512
        Hq, Hkv, Sk, Dh = 32, 8, 65536, 128
        assert Hq % Hkv == 0, (Hq, Hkv)
        return {
            "x": _w((lambda *s: torch.randn(*s, dtype=torch.bfloat16) * 0.2)(B, Sq, D)),
            "k_cache": _w((lambda *s: torch.randn(*s, dtype=torch.bfloat16) * 3.2)(B, Hkv, Sk, Dh)),
            "v_cache": _w((lambda *s: torch.randn(*s, dtype=torch.bfloat16) * 1.6)(B, Hkv, Sk, Dh)),
            "wq": _w((lambda *s: torch.randn(*s, dtype=torch.bfloat16) * 3.2)(D, Hq * Dh) * (D ** -0.5)),
            "wo": _w((lambda *s: torch.randn(*s, dtype=torch.bfloat16) * 1.6)(Hq * Dh, D) * ((Hq * Dh) ** -0.5)),
        }
    _B_in = _B_setup()

    return {
        "A_x": _A_in["x"],
        "A_k_cache": _A_in["k_cache"],
        "A_v_cache": _A_in["v_cache"],
        "A_wq": _A_in["wq"],
        "A_wo": _A_in["wo"],
        "B_x": _B_in["x"],
        "B_k_cache": _B_in["k_cache"],
        "B_v_cache": _B_in["v_cache"],
        "B_wq": _B_in["wq"],
        "B_wo": _B_in["wo"],
    }

def reference(A_x, A_k_cache, A_v_cache, A_wq, A_wo, B_x, B_k_cache, B_v_cache, B_wq, B_wo):
    def _A_ref(x, k_cache, v_cache, wq, wo):
        B, Sq, D = x.shape
        Hq, Dh = 32, 128
        Hkv = k_cache.shape[1]
        rep = Hq // Hkv
        q = (lambda x, *d: x.permute(*d))((x @ wq).reshape(B, Sq, Hq, Dh), 0, 2, 1, 3)
        k = (lambda x, n, axis: torch.repeat_interleave(x, n, dim=axis))(k_cache, rep, axis=1)
        v = (lambda x, n, axis: torch.repeat_interleave(x, n, dim=axis))(v_cache, rep, axis=1)
        scores = torch.einsum("bhqd,bhkd->bhqk", q, k) * (Dh ** -0.5)
        p = _softmax(scores, axis=-1)
        o = torch.einsum("bhqk,bhkd->bhqd", p, v)
        return (lambda x, *d: x.permute(*d))(o, 0, 2, 1, 3).reshape(B, Sq, Hq * Dh) @ wo

    def _B_ref(x, k_cache, v_cache, wq, wo):
        B, Sq, D = x.shape
        Hq, Dh = 32, 128
        Hkv, Sk = k_cache.shape[1], k_cache.shape[2]
        W = min(4096, max(256, Sk // 4))
        rep = Hq // Hkv
        q = (lambda x, *d: x.permute(*d))((x @ wq).reshape(B, Sq, Hq, Dh), 0, 2, 1, 3)
        k = (lambda x, n, axis: torch.repeat_interleave(x, n, dim=axis))(k_cache[:, :, Sk - W:, :], rep, axis=1)
        v = (lambda x, n, axis: torch.repeat_interleave(x, n, dim=axis))(v_cache[:, :, Sk - W:, :], rep, axis=1)
        scores = torch.einsum("bhqd,bhkd->bhqk", q, k) * (Dh ** -0.5)
        p = _softmax(scores, axis=-1)
        o = torch.einsum("bhqk,bhkd->bhqd", p, v)
        return (lambda x, *d: x.permute(*d))(o, 0, 2, 1, 3).reshape(B, Sq, Hq * Dh) @ wo

    a = _A_ref(A_x, A_k_cache, A_v_cache, A_wq, A_wo)
    b = _B_ref(B_x, B_k_cache, B_v_cache, B_wq, B_wo)
    return torch.concatenate([a, b], axis=-1)
```

```python
import sys
NAME = "concat_heads__gqa_block_cached__sliding_block_cached__decode"

QOFF   = 0x1000
REC_ML = 0x10000
REC_O  = 0x20000
OUTP   = 0x200000
STAMP  = 0x300000
WS_USE = 0x400000
L_Q  = 0
L_M  = 2048
L_L  = 2048 + 128
L_O  = 2560
L_OP = 272
L_OW = 8 * L_OP
LDS_BYTES = L_O + 8 * L_OW

class G:
    def __init__(s, pol="nt", stamps=False):
        s.L = []
        s.pol = pol
        s.stamps = stamps
        s.uid = 0
    def __call__(s, x): s.L.append("  " + x)
    def lab(s, x): s.L.append(x + ":")
    def raw(s, x): s.L.append(x)
    def nop(s, n):
        if n > 0: s(f"s_nop {n-1}")
    def text(s): return "\n".join(s.L) + "\n"

S_W, S_H, S_S = 3, 4, 5
SRD_K, SRD_V, SRD_WS, SRD_X, SRD_W = 8, 12, 16, 20, 24
S_KV = 28
S_CNT = 29
S_PLO, S_PHI, S_SCALE, S_LOG2E = 30, 31, 32, 33
S_T0 = 34
P_AX, P_AK, P_AV, P_AWQ, P_AWO, P_BX, P_BK, P_BV, P_BWQ, P_BWO, P_OUT, P_DBG, P_WS = [40 + 2*i for i in range(13)]
S_T1 = 66
S_TAG = 80
V_LANE = 2
V_KO0, V_KO1, V_VO0, V_VO1 = 3, 4, 5, 6
V_Q = 16
V_ACC = 32
V_S = 64
V_P = 72
V_T = 76
V_M, V_L, V_ML = 92, 93, 94
V_X = 95
V_BUF = [104, 168]

def srd(g, r, p, nbytes):
    g(f"s_mov_b32 s{r}, s{p}")
    g(f"s_mov_b32 s{r+1}, s{p+1}")
    g(f"s_mov_b32 s{r+2}, {nbytes:#x}")
    g(f"s_mov_b32 s{r+3}, 0x20000")

def srd_sel(g, r, pa, pb, nbytes):
    g(f"s_cselect_b32 s{r}, s{pb}, s{pa}")
    g(f"s_cselect_b32 s{r+1}, s{pb+1}, s{pa+1}")
    g(f"s_mov_b32 s{r+2}, {nbytes:#x}")
    g(f"s_mov_b32 s{r+3}, 0x20000")

def head(g, label, nwg):
    g.raw(f".globl {label}")
    g.raw(".p2align 8")
    g.raw(f".type {label},@function")
    g.lab(label)
    g(f"s_cmp_ge_u32 s2, {nwg}")
    g(f"s_cbranch_scc1 {label}_end")
    g("s_load_dwordx16 s[40:55], s[0:1], 0")
    g("s_load_dwordx8 s[56:63], s[0:1], 64")
    g("s_load_dwordx2 s[64:65], s[0:1], 96")
    g("v_lshrrev_b32 v1, 6, v0")
    g(f"v_and_b32 v{V_LANE}, 63, v0")
    g(f"s_and_b32 s{S_H}, s2, 7")
    g(f"v_readfirstlane_b32 s{S_W}, v1")
    g(f"s_lshr_b32 s{S_S}, s2, 3")
    g(f"s_mov_b32 s{S_PLO}, 0x05040100")
    g(f"s_mov_b32 s{S_PHI}, 0x07060302")
    g(f"s_mov_b32 s{S_SCALE}, 0x3db504f3")
    g(f"s_mov_b32 s{S_LOG2E}, 0x3fb8aa3b")

def tail(g, label):
    g.lab(f"{label}_end")
    g("s_endpgm")

def desc(g, label, nv, ns=96):
    g.raw(".p2align 6")
    g.raw(f".amdhsa_kernel {label}")
    g.raw(f"  .amdhsa_next_free_vgpr {nv}")
    g.raw(f"  .amdhsa_next_free_sgpr {ns}")
    g.raw(f"  .amdhsa_accum_offset {min(256, (nv + 3)//4*4)}")
    g.raw("  .amdhsa_group_segment_fixed_size 0")
    g.raw("  .amdhsa_kernarg_size 104")
    g.raw("  .amdhsa_user_sgpr_count 2")
    g.raw("  .amdhsa_user_sgpr_kernarg_segment_ptr 1")
    g.raw("  .amdhsa_system_sgpr_workgroup_id_x 1")
    g.raw(".end_amdhsa_kernel")

def stamp(g, idx):
    if not g.stamps: return
    g(f"s_memrealtime s[{S_T1+10}:{S_T1+11}]")
    g(f"s_lshl_b32 s{S_T1+12}, s2, 2")
    g(f"s_add_u32 s{S_T1+12}, s{S_T1+12}, s{S_W}")
    g(f"s_lshl_b32 s{S_T1+12}, s{S_T1+12}, 7")
    g(f"s_add_u32 s{S_T1+12}, s{S_T1+12}, {STAMP + idx*8}")
    g("s_waitcnt lgkmcnt(0)")
    g(f"v_mov_b32 v14, s{S_T1+10}")
    g(f"v_mov_b32 v15, s{S_T1+11}")
    g(f"s_mov_b64 s[{S_T1+10}:{S_T1+11}], exec")
    g("s_mov_b64 exec, 1")
    g(f"buffer_store_dwordx2 v[14:15], off, s[{SRD_WS}:{SRD_WS+3}], s{S_T1+12}")
    g(f"s_mov_b64 exec, s[{S_T1+10}:{S_T1+11}]")

def dot_rows(g, W, X, A, T):
    k = 0
    for ip in range(4):
        for q in range(4):
            t0 = T + (k % 4) * 2; k += 1
            g(f"v_perm_b32 v{t0}, v{W+(2*ip+1)*4+q}, v{W+(2*ip)*4+q}, s{S_PLO}")
            g(f"v_perm_b32 v{t0+1}, v{W+(2*ip+1)*4+q}, v{W+(2*ip)*4+q}, s{S_PHI}")
            c0 = "0" if ip == 0 else f"v{A+2*q}"
            c1 = "0" if ip == 0 else f"v{A+2*q+1}"
            g(f"v_dot2_f32_bf16 v{A+2*q}, v{t0}, v{X+ip}, {c0}")
            g(f"v_dot2_f32_bf16 v{A+2*q+1}, v{t0+1}, v{X+ip}, {c1}")
    g.nop(3)

def reduce8_rows(g, A):
    for d in range(4):
        g(f"v_permlane32_swap_b32 v{A+d}, v{A+d+4}")
    for d in range(4):
        g(f"v_add_f32 v{A+d}, v{A+d}, v{A+d+4}")
    g.nop(2)
    g(f"v_permlane16_swap_b32 v{A}, v{A+2}")
    g(f"v_permlane16_swap_b32 v{A+1}, v{A+3}")
    g(f"v_add_f32 v{A}, v{A}, v{A+2}")
    g(f"v_add_f32 v{A+1}, v{A+1}, v{A+3}")

def dpp(op, d, a, b, ctl):
    return f"{op}_dpp v{d}, v{a}, v{b} {ctl} row_mask:0xf bank_mask:0xf"

QW, QX, QA, QT = V_ACC, V_S, V_S + 4, V_T
def qproj_issue(g):
    g(f"s_cmp_ge_u32 s{S_W}, 2")
    srd_sel(g, SRD_W, P_AWQ, P_BWQ, 0x400000)
    srd_sel(g, SRD_X, P_AX, P_BX, 1024)
    g(f"s_lshl_b32 s{S_T0}, s{S_H}, 10")
    g(f"s_lshl_b32 s{S_T0+1}, s{S_S}, 5")
    g(f"s_add_u32 s{S_T0}, s{S_T0}, s{S_T0+1}")
    g(f"s_and_b32 s{S_T0+1}, s{S_W}, 1")
    g(f"s_lshl_b32 s{S_T0+1}, s{S_T0+1}, 4")
    g(f"s_add_u32 s{S_T0}, s{S_T0}, s{S_T0+1}")
    g(f"v_lshlrev_b32 v7, 16, v{V_LANE}")
    g(f"v_lshlrev_b32 v8, 4, v{V_LANE}")
    for i in range(8):
        g(f"buffer_load_dwordx4 v[{QW+4*i}:{QW+4*i+3}], v7, s[{SRD_W}:{SRD_W+3}], s{S_T0} offen")
        if i < 7: g(f"s_add_u32 s{S_T0}, s{S_T0}, 8192")
    g(f"buffer_load_dwordx4 v[{QX}:{QX+3}], v8, s[{SRD_X}:{SRD_X+3}], 0 offen")

def qproj_compute(g, later_loads, sc):
    g(f"s_waitcnt vmcnt({later_loads})")
    dot_rows(g, QW, QX, QA, QT)
    reduce8_rows(g, QA)
    for sh in (8, 4, 2, 1):
        g.nop(1)
        g(dpp("v_add_f32", QA, QA, QA, f"row_ror:{sh}"))
        g(dpp("v_add_f32", QA+1, QA+1, QA+1, f"row_ror:{sh}"))
    g(f"v_cvt_pk_bf16_f32 v{QA}, v{QA}, v{QA+1}")
    g(f"v_mov_b32 v{QA+1}, s{S_TAG}")
    g(f"s_lshr_b32 s{S_T0}, s{S_W}, 1")
    g(f"s_lshl_b32 s{S_T0}, s{S_T0}, 3")
    g(f"s_add_u32 s{S_T0}, s{S_T0}, s{S_H}")
    g(f"s_lshl_b32 s{S_T0}, s{S_T0}, 11")
    g(f"s_lshl_b32 s{S_T0+1}, s{S_S}, 6")
    g(f"s_add_u32 s{S_T0}, s{S_T0}, s{S_T0+1}")
    g(f"s_and_b32 s{S_T0+1}, s{S_W}, 1")
    g(f"s_lshl_b32 s{S_T0+1}, s{S_T0+1}, 5")
    g(f"s_add_u32 s{S_T0}, s{S_T0}, s{S_T0+1}")
    g(f"s_add_u32 s{S_T0}, s{S_T0}, {QOFF}")
    g(f"v_lshrrev_b32 v7, 4, v{V_LANE}")
    g(f"v_lshlrev_b32 v7, 3, v7")
    g(f"s_mov_b32 exec_lo, 0x00010001")
    g(f"s_mov_b32 exec_hi, 0x00010001")
    g(f"buffer_store_dwordx2 v[{QA}:{QA+1}], v7, s[{SRD_WS}:{SRD_WS+3}], s{S_T0} offen {sc}")
    g("s_mov_b64 exec, -1")

def kv_offsets(g):
    L = V_LANE
    g(f"v_and_b32 v7, 3, v{L}")
    g(f"v_lshlrev_b32 v7, 10, v7")
    g(f"v_bfe_u32 v8, v{L}, 2, 2")
    g(f"v_lshl_add_u32 v7, v8, 8, v7")
    g(f"v_lshrrev_b32 v8, 4, v{L}")
    g(f"v_lshl_add_u32 v{V_KO0}, v8, 4, v7")
    g(f"v_add_u32 v{V_KO1}, 0x1000, v{V_KO0}")
    g(f"v_lshlrev_b32 v{V_VO0}, 4, v{L}")
    g(f"v_add_u32 v{V_VO1}, 0x1000, v{V_VO0}")

def issue_k(g, b):
    r = V_BUF[b]
    for t in range(2):
        for j in range(4):
            g(f"buffer_load_dwordx4 v[{r}:{r+3}], v{V_KO0+t}, s[{SRD_K}:{SRD_K+3}], s{S_KV} offen offset:{j*64} {g.pol}")
            r += 4
def issue_v(g, b):
    r = V_BUF[b] + 32
    for t in range(2):
        for j in range(4):
            g(f"buffer_load_dwordx4 v[{r}:{r+3}], v{V_VO0+t}, s[{SRD_V}:{SRD_V+3}], s{S_KV} offen offset:{j*1024} {g.pol}")
            r += 4

def load_q(g, P):
    for j in range(4):
        g(f"ds_read_b128 v[{V_Q+4*j}:{V_Q+4*j+3}], v9 offset:{L_Q + P*1024 + j*64}")

def init_state(g):
    for i in range(32):
        g(f"v_mov_b32 v{V_ACC+i}, 0")
    g(f"v_mov_b32 v{V_M}, 0xff800000")
    g(f"v_mov_b32 v{V_L}, 0")
    g(f"v_mov_b32 v{V_ML}, 0")

def process(g, b, mid=None):
    K = V_BUF[b]; V = K + 32
    S = V_S; X = V_X
    g.uid += 1
    u = g.uid
    g("s_waitcnt vmcnt(24)")
    for j in range(4):
        for t in range(2):
            c = "0" if j == 0 else f"v[{S+4*t}:{S+4*t+3}]"
            g(f"v_mfma_f32_16x16x32_bf16 v[{S+4*t}:{S+4*t+3}], v[{K+16*t+4*j}:{K+16*t+4*j+3}], v[{V_Q+4*j}:{V_Q+4*j+3}], {c}")
    issue_k(g, b)
    g.nop(1)
    for i in range(8): g(f"v_cvt_pk_bf16_f32 v{S+i}, 0, v{S+i}")
    for i in range(8): g(f"v_mul_f32 v{S+i}, s{S_SCALE}, v{S+i}")
    for i in range(8): g(f"v_cvt_pk_bf16_f32 v{S+i}, 0, v{S+i}")
    g(f"v_max3_f32 v{X}, v{S}, v{S+1}, v{S+2}")
    g(f"v_max3_f32 v{X+1}, v{S+3}, v{S+4}, v{S+5}")
    g(f"v_max3_f32 v{X}, v{X}, v{S+6}, v{S+7}")
    g(f"v_max_f32 v{X}, v{X}, v{X+1}")
    g(f"v_cmp_gt_f32 vcc, v{X}, v{V_M}")
    g(f"s_cbranch_vccz L_nors_{u}")
    g(f"v_max_f32 v{X}, v{X}, v{V_M}")
    g(f"v_mov_b32 v{X+1}, v{X}")
    g.nop(2)
    g(f"v_permlane32_swap_b32 v{X}, v{X+1}")
    g(f"v_max_f32 v{X}, v{X}, v{X+1}")
    g(f"v_mov_b32 v{X+1}, v{X}")
    g.nop(2)
    g(f"v_permlane16_swap_b32 v{X}, v{X+1}")
    g(f"v_max_f32 v{X}, v{X}, v{X+1}")
    g(f"v_sub_f32 v{X+1}, v{V_M}, v{X}")
    g(f"v_mul_f32 v{X+1}, s{S_LOG2E}, v{X+1}")
    g(f"v_exp_f32 v{X+1}, v{X+1}")
    g(f"v_mov_b32 v{V_M}, v{X}")
    g(f"v_mul_f32 v{V_ML}, s{S_LOG2E}, v{X}")
    g(f"v_mul_f32 v{V_L}, v{V_L}, v{X+1}")
    for i in range(32):
        g(f"v_mul_f32 v{V_ACC+i}, v{V_ACC+i}, v{X+1}")
    g.lab(f"L_nors_{u}")
    for i in range(8): g(f"v_fma_f32 v{S+i}, v{S+i}, s{S_LOG2E}, -v{V_ML}")
    for i in range(8): g(f"v_exp_f32 v{S+i}, v{S+i}")
    g.nop(1)
    for i in range(4): g(f"v_cvt_pk_bf16_f32 v{V_P+i}, v{S+2*i}, v{S+2*i+1}")
    g(f"v_add_f32 v{X}, v{S}, v{S+1}")
    g(f"v_add_f32 v{X+1}, v{S+2}, v{S+3}")
    g(f"v_add_f32 v{X+2}, v{S+4}, v{S+5}")
    g(f"v_add_f32 v{X+3}, v{S+6}, v{S+7}")
    g(f"v_add_f32 v{X}, v{X}, v{X+1}")
    g(f"v_add_f32 v{X+2}, v{X+2}, v{X+3}")
    g(f"v_add_f32 v{X}, v{X}, v{X+2}")
    g(f"v_add_f32 v{V_L}, v{V_L}, v{X}")
    g("s_waitcnt vmcnt(24)")
    def perms(d):
        t = V_T + (d % 4) * 4
        sel = S_PHI if d & 1 else S_PLO
        for ip in range(4):
            g(f"v_perm_b32 v{t+ip}, v{V+(2*ip+1)*4+(d>>1)}, v{V+(2*ip)*4+(d>>1)}, s{sel}")
    def pv(d):
        t = V_T + (d % 4) * 4
        a = V_ACC + 4*d
        g(f"v_mfma_f32_16x16x32_bf16 v[{a}:{a+3}], v[{t}:{t+3}], v[{V_P}:{V_P+3}], v[{a}:{a+3}]")
    perms(0)
    for d in range(8):
        if d < 7: perms(d+1)
        else: g.nop(2)
        pv(d)
    if mid: mid()
    issue_v(g, b)
    g(f"s_add_u32 s{S_KV}, s{S_KV}, 0x8000")

def save_partials(g, P):
    X = V_X
    g(f"v_mov_b32 v{X}, v{V_L}")
    g.nop(2)
    g(f"v_permlane32_swap_b32 v{V_L}, v{X}")
    g(f"v_add_f32 v{V_L}, v{V_L}, v{X}")
    g(f"v_mov_b32 v{X}, v{V_L}")
    g.nop(2)
    g(f"v_permlane16_swap_b32 v{V_L}, v{X}")
    g(f"v_add_f32 v{V_L}, v{V_L}, v{X}")
    g("s_mov_b32 exec_lo, 0x000f000f")
    g("s_mov_b32 exec_hi, 0x000f000f")
    for d in range(8):
        g(f"ds_write_b128 v10, v[{V_ACC+4*d}:{V_ACC+4*d+3}] offset:{L_O + P*4*L_OW + d*L_OP}")
    g("s_mov_b64 exec, 15")
    g(f"ds_write_b32 v11, v{V_M} offset:{L_M + P*64}")
    g(f"ds_write_b32 v11, v{V_L} offset:{L_L + P*64}")
    g("s_mov_b64 exec, -1")

def lds_addrs(g):
    L = V_LANE
    g(f"v_and_b32 v7, 3, v{L}")
    g(f"v_lshrrev_b32 v8, 4, v{L}")
    g(f"v_lshlrev_b32 v9, 8, v7")
    g(f"v_lshl_add_u32 v9, v8, 4, v9")
    g(f"v_lshl_add_u32 v10, v7, 2, v8")
    g(f"v_lshlrev_b32 v10, 4, v10")
    g(f"s_mul_i32 s{S_T0}, s{S_W}, {L_OW}")
    g(f"v_add_u32 v10, s{S_T0}, v10")
    g(f"s_lshl_b32 s{S_T0}, s{S_W}, 2")
    g(f"v_lshlrev_b32 v11, 4, v7")
    g(f"v_add_u32 v11, s{S_T0}, v11")

def wg_combine(g, sc):
    A = V_ACC
    g("v_lshrrev_b32 v7, 5, v0")
    g("v_lshlrev_b32 v8, 4, v7")
    g(f"ds_read_b128 v[{A}:{A+3}], v8 offset:{L_M}")
    g(f"ds_read_b128 v[{A+4}:{A+7}], v8 offset:{L_L}")
    g("v_lshrrev_b32 v12, 7, v0")
    g(f"v_mul_u32_u24 v12, {4*L_OW}, v12")
    g("v_and_b32 v13, 7, v0")
    g(f"v_mul_u32_u24 v8, {L_OP}, v13")
    g("v_add_u32 v12, v12, v8")
    g("v_bfe_u32 v8, v0, 3, 4")
    g("v_lshl_add_u32 v12, v8, 4, v12")
    for w in range(4):
        g(f"ds_read_b128 v[{A+8+4*w}:{A+11+4*w}], v12 offset:{L_O + w*L_OW}")
    g("v_lshrrev_b32 v12, 7, v0")
    g("v_lshlrev_b32 v12, 19, v12")
    g("v_lshl_add_u32 v12, v8, 12, v12")
    g("v_lshl_add_u32 v12, v13, 4, v12")
    g(f"s_lshl_b32 s{S_T0}, s{S_H}, 16")
    g(f"s_lshl_b32 s{S_T0+1}, s{S_S}, 7")
    g(f"s_add_u32 s{S_T0}, s{S_T0}, s{S_T0+1}")
    g(f"s_add_u32 s{S_T0}, s{S_T0}, {REC_O}")
    g("v_lshrrev_b32 v13, 7, v0")
    g("v_lshlrev_b32 v13, 13, v13")
    g("v_bfe_u32 v8, v0, 5, 2")
    g("v_lshl_add_u32 v13, v8, 8, v13")
    g(f"s_lshl_b32 s{S_T0+1}, s{S_H}, 10")
    g(f"s_lshl_b32 s{S_T0+2}, s{S_S}, 3")
    g(f"s_add_u32 s{S_T0+1}, s{S_T0+1}, s{S_T0+2}")
    g(f"s_add_u32 s{S_T0+1}, s{S_T0+1}, {REC_ML}")
    g("s_waitcnt lgkmcnt(4)")
    M = A + 24
    g(f"v_max3_f32 v{M}, v{A}, v{A+1}, v{A+2}")
    g(f"v_max_f32 v{M}, v{M}, v{A+3}")
    for w in range(4): g(f"v_sub_f32 v{A+w}, v{A+w}, v{M}")
    for w in range(4): g(f"v_mul_f32 v{A+w}, s{S_LOG2E}, v{A+w}")
    for w in range(4): g(f"v_exp_f32 v{A+w}, v{A+w}")
    g.nop(1)
    g(f"v_mul_f32 v{M+1}, v{A}, v{A+4}")
    for w in range(1, 4): g(f"v_fmac_f32 v{M+1}, v{A+w}, v{A+4+w}")
    g("s_waitcnt lgkmcnt(0)")
    O = A + 28
    for r in range(4): g(f"v_mul_f32 v{O+r}, v{A}, v{A+8+r}")
    for w in range(1, 4):
        for r in range(4): g(f"v_fmac_f32 v{O+r}, v{A+w}, v{A+8+4*w+r}")
    g(f"buffer_store_dwordx4 v[{O}:{O+3}], v12, s[{SRD_WS}:{SRD_WS+3}], s{S_T0} offen {sc}")
    g("s_mov_b32 exec_lo, 1")
    g("s_mov_b32 exec_hi, 1")
    g(f"buffer_store_dwordx2 v[{M}:{M+1}], v13, s[{SRD_WS}:{SRD_WS+3}], s{S_T0+1} offen {sc}")
    g("s_mov_b64 exec, -1")

def wo_setup(g, vo0, vo1, ssoff):
    g(f"s_cmp_ge_u32 s{S_S}, 16")
    srd_sel(g, SRD_W, P_AWO, P_BWO, 0x400000)
    g(f"v_lshrrev_b32 v7, 4, v{V_LANE}")
    g(f"v_lshlrev_b32 v7, 13, v7")
    g(f"v_and_b32 v8, 15, v{V_LANE}")
    g(f"v_lshl_add_u32 v7, v8, 4, v7")
    g(f"s_lshl_b32 s{S_T0}, s{S_W}, 8")
    g(f"v_add_u32 v{vo0}, s{S_T0}, v7")
    g(f"v_add_u32 v{vo1}, 0x1000, v{vo0}")
    g(f"s_lshl_b32 s{ssoff}, s{S_H}, 19")
    g(f"s_and_b32 s{S_T0}, s{S_S}, 15")
    g(f"s_lshl_b32 s{S_T0}, s{S_T0}, 15")
    g(f"s_add_u32 s{ssoff}, s{ssoff}, s{S_T0}")

def s2_addrs(g):
    g(f"v_lshrrev_b32 v7, 3, v{V_LANE}")
    g(f"v_and_b32 v8, 7, v{V_LANE}")
    g("v_lshlrev_b32 v12, 9, v7")
    g("v_lshl_add_u32 v12, v8, 4, v12")
    g("v_lshlrev_b32 v13, 5, v7")
    g(f"s_lshr_b32 s{S_T0+2}, s{S_S}, 4")
    g(f"s_lshl_b32 s{S_T0+2}, s{S_T0+2}, 3")
    g(f"s_add_u32 s{S_T0+2}, s{S_T0+2}, s{S_H}")
    g(f"s_lshl_b32 s{S_T0}, s{S_T0+2}, 16")
    g(f"s_and_b32 s{S_T0+3}, s{S_S}, 15")
    g(f"s_lshl_b32 s{S_T0+3}, s{S_T0+3}, 12")
    g(f"s_add_u32 s{S_T0}, s{S_T0}, s{S_T0+3}")
    g(f"s_add_u32 s{S_T0}, s{S_T0}, {REC_O}")
    g(f"s_lshl_b32 s{S_T0+1}, s{S_T0+2}, 10")
    g(f"s_and_b32 s{S_T0+3}, s{S_S}, 12")
    g(f"s_lshl_b32 s{S_T0+3}, s{S_T0+3}, 6")
    g(f"s_add_u32 s{S_T0+1}, s{S_T0+1}, s{S_T0+3}")
    g(f"s_add_u32 s{S_T0+1}, s{S_T0+1}, {REC_ML}")

S2_ML = V_ACC
S2_O = V_ACC + 8
def s2_loads(g, sc):
    g(f"buffer_load_dwordx4 v[{S2_ML}:{S2_ML+3}], v13, s[{SRD_WS}:{SRD_WS+3}], s{S_T0+1} offen {sc}")
    g(f"buffer_load_dwordx4 v[{S2_ML+4}:{S2_ML+7}], v13, s[{SRD_WS}:{SRD_WS+3}], s{S_T0+1} offen offset:16 {sc}")
    for i in range(4):
        g(f"buffer_load_dwordx4 v[{S2_O+4*i}:{S2_O+4*i+3}], v12, s[{SRD_WS}:{SRD_WS+3}], s{S_T0} offen offset:{128*i} {sc}")

def allreduce(g, op, r, t):
    g.nop(2)
    g(dpp(op, r, r, r, "row_ror:8"))
    g(f"v_mov_b32 v{t}, v{r}")
    g.nop(2)
    g(f"v_permlane16_swap_b32 v{r}, v{t}")
    g(f"{op} v{r}, v{r}, v{t}")
    g(f"v_mov_b32 v{t}, v{r}")
    g.nop(2)
    g(f"v_permlane32_swap_b32 v{r}, v{t}")
    g(f"{op} v{r}, v{r}, v{t}")

def s2_compute(g, W, sc):
    ML = S2_ML; O = S2_O
    M = V_ACC + 24; T = M + 1; Ls = M + 2; R = V_ACC + 28
    g(f"v_max3_f32 v{M}, v{ML}, v{ML+2}, v{ML+4}")
    g(f"v_max_f32 v{M}, v{M}, v{ML+6}")
    allreduce(g, "v_max_f32", M, T)
    for i in range(4): g(f"v_sub_f32 v{ML+2*i}, v{ML+2*i}, v{M}")
    for i in range(4): g(f"v_mul_f32 v{ML+2*i}, s{S_LOG2E}, v{ML+2*i}")
    for i in range(4): g(f"v_exp_f32 v{ML+2*i}, v{ML+2*i}")
    g.nop(1)
    g(f"v_mul_f32 v{Ls}, v{ML}, v{ML+1}")
    for r in range(4): g(f"v_mul_f32 v{R+r}, v{ML}, v{O+r}")
    for i in range(1, 4):
        g(f"v_fmac_f32 v{Ls}, v{ML+2*i}, v{ML+2*i+1}")
        for r in range(4): g(f"v_fmac_f32 v{R+r}, v{ML+2*i}, v{O+4*i+r}")
    allreduce(g, "v_add_f32", Ls, T)
    g(f"v_rcp_f32 v{Ls}, v{Ls}")
    g(f"v_permlane32_swap_b32 v{R}, v{R+2}")
    g(f"v_permlane32_swap_b32 v{R+1}, v{R+3}")
    g(f"v_add_f32 v{R}, v{R}, v{R+2}")
    g(f"v_add_f32 v{R+1}, v{R+1}, v{R+3}")
    g.nop(2)
    g(f"v_permlane16_swap_b32 v{R}, v{R+1}")
    g(f"v_add_f32 v{R}, v{R}, v{R+1}")
    g.nop(2)
    g(dpp("v_add_f32", R, R, R, "row_ror:8"))
    g(f"v_mul_f32 v{R}, v{R}, v{Ls}")
    g.nop(2)
    B = V_S
    for d in range(8):
        g(f"v_mov_b32_dpp v{B+d}, v{R} row_newbcast:{d} row_mask:0xf bank_mask:0xf")
    for i in range(4):
        g(f"v_cvt_pk_bf16_f32 v{V_P+i}, v{B+2*i}, v{B+2*i+1}")
    return

def s2_project(g, W, sc):
    A = V_S
    dot_rows(g, W, V_P, A, V_T)
    reduce8_rows(g, A)
    g(f"s_lshr_b32 s{S_T0}, s{S_S}, 4")
    g(f"s_lshl_b32 s{S_T0}, s{S_T0}, 3")
    g(f"s_add_u32 s{S_T0}, s{S_T0}, s{S_H}")
    g(f"s_lshl_b32 s{S_T0}, s{S_T0}, 4")
    g(f"s_and_b32 s{S_T0+1}, s{S_S}, 15")
    g(f"s_add_u32 s{S_T0}, s{S_T0}, s{S_T0+1}")
    g(f"s_lshl_b32 s{S_T0}, s{S_T0}, 11")
    g(f"s_lshl_b32 s{S_T0+1}, s{S_W}, 9")
    g(f"s_add_u32 s{S_T0}, s{S_T0}, s{S_T0+1}")
    g(f"s_add_u32 s{S_T0}, s{S_T0}, {OUTP}")
    g(f"v_and_b32 v7, 15, v{V_LANE}")
    g(f"v_lshlrev_b32 v7, 5, v7")
    g(f"v_lshrrev_b32 v8, 4, v{V_LANE}")
    g(f"v_lshl_add_u32 v7, v8, 3, v7")
    g(f"buffer_store_dwordx2 v[{A}:{A+1}], v7, s[{SRD_WS}:{SRD_WS+3}], s{S_T0} offen {sc}")

S3 = V_ACC
def s3_addrs(g, sj):
    g(f"v_lshrrev_b32 v7, 2, v{V_LANE}")
    g("v_lshlrev_b32 v12, 11, v7")
    g(f"v_and_b32 v8, 3, v{V_LANE}")
    g("v_lshl_add_u32 v12, v8, 4, v12")
    g(f"s_lshr_b32 s{S_T0}, s{sj}, 5")
    g(f"s_lshl_b32 s{S_T0}, s{S_T0}, 18")
    g(f"s_and_b32 s{S_T0+1}, s{sj}, 31")
    g(f"s_lshl_b32 s{S_T0+1}, s{S_T0+1}, 6")
    g(f"s_add_u32 s{S_T0}, s{S_T0}, s{S_T0+1}")
    g(f"s_add_u32 s{S_T0}, s{S_T0}, {OUTP}")
def s3_loads(g, sc):
    g(f"s_mov_b32 s{S_T0+1}, s{S_T0}")
    for i in range(8):
        g(f"buffer_load_dwordx4 v[{S3+4*i}:{S3+4*i+3}], v12, s[{SRD_WS}:{SRD_WS+3}], s{S_T0+1} offen {sc}")
        if i < 7: g(f"s_add_u32 s{S_T0+1}, s{S_T0+1}, 0x8000")
def s3_compute(g, sj):
    E = S3
    for st in (16, 8, 4):
        for r in range(st):
            g(f"v_add_f32 v{E+r}, v{E+r}, v{E+st+r}")
    g.nop(2)
    g(f"v_permlane32_swap_b32 v{E}, v{E+2}")
    g(f"v_permlane32_swap_b32 v{E+1}, v{E+3}")
    g(f"v_add_f32 v{E}, v{E}, v{E+2}")
    g(f"v_add_f32 v{E+1}, v{E+1}, v{E+3}")
    g(f"v_mov_b32 v{E+2}, v{E}")
    g(f"v_mov_b32 v{E+3}, v{E+1}")
    g.nop(2)
    g(f"v_permlane16_swap_b32 v{E}, v{E+2}")
    g(f"v_permlane16_swap_b32 v{E+1}, v{E+3}")
    g(f"v_add_f32 v{E}, v{E}, v{E+2}")
    g(f"v_add_f32 v{E+1}, v{E+1}, v{E+3}")
    for sh in (4, 8):
        g.nop(1)
        g(dpp("v_add_f32", E, E, E, f"row_ror:{sh}"))
        g(dpp("v_add_f32", E+1, E+1, E+1, f"row_ror:{sh}"))
    g(f"v_cvt_pk_bf16_f32 v{E}, v{E}, v{E+1}")
    srd(g, SRD_X, P_OUT, 2048)
    g(f"s_lshl_b32 s{S_T0}, s{sj}, 5")
    g(f"v_and_b32 v7, 3, v{V_LANE}")
    g("v_lshlrev_b32 v7, 3, v7")
    g(f"v_lshrrev_b32 v8, 5, v{V_LANE}")
    g("v_lshl_add_u32 v7, v8, 2, v7")
    g("s_mov_b32 exec_lo, 15")
    g("s_mov_b32 exec_hi, 15")
    g(f"buffer_store_dword v{E}, v7, s[{SRD_X}:{SRD_X+3}], s{S_T0} offen")
    g("s_mov_b64 exec, -1")

def kv_start(g):
    kv_offsets(g)
    srd(g, SRD_K, P_BK, 0x8000000)
    srd(g, SRD_V, P_BV, 0x8000000)
    g(f"s_lshl_b32 s{S_T0}, s{S_H}, 24")
    g(f"s_lshl_b32 s{S_T0+1}, s{S_W}, 13")
    g(f"s_add_u32 s{S_T0}, s{S_T0}, s{S_T0+1}")
    g(f"s_lshl_b32 s{S_T0+1}, s{S_S}, 15")
    g(f"s_add_u32 s{S_KV}, s{S_T0}, s{S_T0+1}")
    g(f"s_add_u32 s{S_KV}, s{S_KV}, {15 << 20}")
    issue_k(g, 0); issue_v(g, 0)
    g(f"s_mov_b32 s{SRD_K}, s{P_AK}"); g(f"s_mov_b32 s{SRD_K+1}, s{P_AK+1}")
    g(f"s_mov_b32 s{SRD_V}, s{P_AV}"); g(f"s_mov_b32 s{SRD_V+1}, s{P_AV+1}")
    g(f"s_lshl_b32 s{S_T0+1}, s{S_S}, 19")
    g(f"s_add_u32 s{S_KV}, s{S_T0}, s{S_T0+1}")
    issue_k(g, 1); issue_v(g, 1)
    g(f"s_add_u32 s{S_KV}, s{S_KV}, 0x8000")

def gen_multi(pol="nt", stamps=False):
    g = G(pol, stamps)
    k1, k2, k3, k4 = "qproj_kernel", NAME + "_kernel", "comb_kernel", "fin_kernel"
    g.raw(f"; @launch kernel={k1} grid=(256,1,1) block=(256,1,1) lds=0")
    g.raw(f"; @launch kernel={k2} grid=(256,1,1) block=(256,1,1) lds={LDS_BYTES}")
    g.raw(f"; @launch kernel={k3} grid=(256,1,1) block=(256,1,1) lds=0")
    g.raw(f"; @launch kernel={k4} grid=(64,1,1) block=(64,1,1) lds=0")
    g.raw('.amdgcn_target "amdgcn-amd-amdhsa--gfx950"')
    g.raw(".text")
    head(g, k1, 256)
    g(f"s_mov_b32 s{S_TAG}, 0")
    g("s_waitcnt lgkmcnt(0)")
    srd(g, SRD_WS, P_WS, WS_USE)
    qproj_issue(g)
    qproj_compute(g, 0, "")
    tail(g, k1)
    head(g, k2, 256)
    g("s_waitcnt lgkmcnt(0)")
    srd(g, SRD_WS, P_WS, WS_USE)
    g(f"s_lshl_b32 s{S_T0}, s{S_H}, 11")
    g(f"s_lshl_b32 s{S_T0+1}, s{S_W}, 9")
    g(f"s_add_u32 s{S_T0}, s{S_T0}, s{S_T0+1}")
    g(f"s_add_u32 s{S_T0}, s{S_T0}, {QOFF}")
    g(f"s_add_u32 s{S_T0+1}, s{S_T0}, 0x4000")
    g(f"v_lshlrev_b32 v7, 3, v{V_LANE}")
    g(f"buffer_load_dwordx2 v[{V_S}:{V_S+1}], v7, s[{SRD_WS}:{SRD_WS+3}], s{S_T0} offen")
    g(f"buffer_load_dwordx2 v[{V_S+2}:{V_S+3}], v7, s[{SRD_WS}:{SRD_WS+3}], s{S_T0+1} offen")
    kv_start(g)
    lds_addrs(g)
    init_state(g)
    g("v_lshlrev_b32 v7, 2, v0")
    g("s_waitcnt vmcnt(32)")
    g(f"ds_write_b32 v7, v{V_S} offset:{L_Q}")
    g(f"ds_write_b32 v7, v{V_S+2} offset:{L_Q+1024}")
    g("s_waitcnt lgkmcnt(0)")
    g("s_barrier")
    load_q(g, 1)
    g("s_waitcnt lgkmcnt(0)")
    process(g, 0)
    load_q(g, 0)
    g.nop(8)
    save_partials(g, 1)
    init_state(g)
    g(f"s_mov_b32 s{S_CNT}, 8")
    g("s_waitcnt lgkmcnt(0)")
    g.lab("L_loop")
    g(f"s_cmp_eq_u32 s{S_CNT}, 1")
    g(f"s_cselect_b32 s{SRD_K+2}, 0, s{SRD_K+2}")
    g(f"s_cselect_b32 s{SRD_V+2}, 0, s{SRD_V+2}")
    process(g, 1)
    process(g, 0)
    g(f"s_sub_u32 s{S_CNT}, s{S_CNT}, 1")
    g(f"s_cmp_lg_u32 s{S_CNT}, 0")
    g("s_cbranch_scc1 L_loop")
    g.nop(8)
    save_partials(g, 0)
    g("s_waitcnt lgkmcnt(0)")
    g("s_barrier")
    wg_combine(g, "")
    tail(g, k2)
    head(g, k3, 256)
    g("s_waitcnt lgkmcnt(0)")
    srd(g, SRD_WS, P_WS, WS_USE)
    wo_setup(g, V_VO0, V_VO1, S_KV)
    W = V_BUF[0]
    for t in range(2):
        for j in range(4):
            r = W + 16*t + 4*j
            g(f"buffer_load_dwordx4 v[{r}:{r+3}], v{V_VO0+t}, s[{SRD_W}:{SRD_W+3}], s{S_KV} offen offset:{j*1024} {g.pol}")
    s2_addrs(g)
    s2_loads(g, "")
    g("s_waitcnt vmcnt(0)")
    s2_compute(g, W, "")
    s2_project(g, W, "")
    tail(g, k3)
    head(g, k4, 64)
    g("s_waitcnt lgkmcnt(0)")
    srd(g, SRD_WS, P_WS, WS_USE)
    s3_addrs(g, 2)
    s3_loads(g, "")
    g("s_waitcnt vmcnt(0)")
    s3_compute(g, 2)
    tail(g, k4)
    g.raw('.section .rodata,"a"')
    desc(g, k1, 104); desc(g, k2, 232); desc(g, k3, 136); desc(g, k4, 64)
    return g.text()

if __name__ == "__main__":
    open("multi.s", "w").write(gen_multi())
    open("multi_def.s", "w").write(gen_multi(pol=""))
```

```python
import sys
NAME = "concat_heads__gqa_block_cached__sliding_block_cached__decode"

EPOCH  = 0x0
QOFF   = 0x1000
REC_ML = 0x10000
REC_O  = 0x20000
OUTP   = 0x200000
STAMP  = 0x300000
WS_USE = 0x400000
L_Q  = 0
L_M  = 2048
L_L  = 2048 + 128
L_O  = 2560
L_OP = 272
L_OW = 8 * L_OP
LDS_BYTES = L_O + 8 * L_OW

class G:
    def __init__(s, **kw):
        s.L = []
        s.pol = kw.get("pol", "nt")
        s.stamps = kw.get("stamps", False)
        s.nbuf = kw.get("nbuf", 3)
        s.kw = kw
        s.uid = 0
    def __call__(s, x): s.L.append("  " + x)
    def lab(s, x): s.L.append(x + ":")
    def raw(s, x): s.L.append(x)
    def nop(s, n):
        if n > 0: s(f"s_nop {n-1}")
    def text(s): return "\n".join(s.L) + "\n"

S_W, S_H, S_S = 3, 4, 5
S_SPIN = 6
S_VOFF = 7
SRD_K, SRD_V, SRD_WS, SRD_X, SRD_W = 8, 12, 16, 20, 24
S_KOFF = 28
S_CNT = 29
S_PLO, S_PHI, S_SCALE, S_LOG2E = 30, 31, 32, 33
S_T0 = 34
P_AX, P_AK, P_AV, P_AWQ, P_AWO, P_BX, P_BK, P_BV, P_BWQ, P_BWO, P_OUT, P_DBG, P_WS = [40 + 2*i for i in range(13)]
S_SEL = 66
S_SELC = 70
S_A0, S_A1 = 71, 72
S_ST = 76
V_LANE = 2
V_KO0, V_KO1, V_VO0, V_VO1 = 3, 4, 5, 6
V_TAG = 14
V_Q = 16
V_ACC = 32
V_S = 64
V_P = 72
V_T = 76
V_M, V_L, V_ML = 92, 93, 94
V_X = 95
V_B0 = 104
SPIN = 1 << 16

def srd(g, r, p, nbytes):
    g(f"s_mov_b32 s{r}, s{p}")
    g(f"s_mov_b32 s{r+1}, s{p+1}")
    g(f"s_mov_b32 s{r+2}, {nbytes:#x}")
    g(f"s_mov_b32 s{r+3}, 0x20000")

def srd_sel(g, r, pa, pb, nbytes):
    g(f"s_cselect_b32 s{r}, s{pb}, s{pa}")
    g(f"s_cselect_b32 s{r+1}, s{pb+1}, s{pa+1}")
    g(f"s_mov_b32 s{r+2}, {nbytes:#x}")
    g(f"s_mov_b32 s{r+3}, 0x20000")

def stamp(g, idx):
    if g.stamps: g(f"s_memrealtime s[{S_ST+2*idx}:{S_ST+2*idx+1}]")

def stamp_flush(g, n):
    if not g.stamps: return
    g("s_waitcnt lgkmcnt(0)")
    g(f"s_lshl_b32 s{S_T0}, s2, 2")
    g(f"s_add_u32 s{S_T0}, s{S_T0}, s{S_W}")
    g(f"s_lshl_b32 s{S_T0}, s{S_T0}, 6")
    g(f"s_add_u32 s{S_T0}, s{S_T0}, {STAMP}")
    for i in range(12): g(f"v_mov_b32 v{V_ACC+i}, s{S_ST+2*i}")
    g("s_mov_b64 exec, 1")
    for i in range(3):
        g(f"buffer_store_dwordx4 v[{V_ACC+4*i}:{V_ACC+4*i+3}], off, s[{SRD_WS}:{SRD_WS+3}], s{S_T0} offset:{16*i}")
    g("s_mov_b64 exec, -1")

def dot_rows(g, W, X, A, T):
    k = 0
    for ip in range(4):
        for q in range(4):
            t0 = T + (k % 4) * 2; k += 1
            g(f"v_perm_b32 v{t0}, v{W+(2*ip+1)*4+q}, v{W+(2*ip)*4+q}, s{S_PLO}")
            g(f"v_perm_b32 v{t0+1}, v{W+(2*ip+1)*4+q}, v{W+(2*ip)*4+q}, s{S_PHI}")
            c0 = "0" if ip == 0 else f"v{A+2*q}"
            c1 = "0" if ip == 0 else f"v{A+2*q+1}"
            g(f"v_dot2_f32_bf16 v{A+2*q}, v{t0}, v{X+ip}, {c0}")
            g(f"v_dot2_f32_bf16 v{A+2*q+1}, v{t0+1}, v{X+ip}, {c1}")
    g.nop(3)

def reduce8_rows(g, A):
    for d in range(4):
        g(f"v_permlane32_swap_b32 v{A+d}, v{A+d+4}")
    for d in range(4):
        g(f"v_add_f32 v{A+d}, v{A+d}, v{A+d+4}")
    g.nop(2)
    g(f"v_permlane16_swap_b32 v{A}, v{A+2}")
    g(f"v_permlane16_swap_b32 v{A+1}, v{A+3}")
    g(f"v_add_f32 v{A}, v{A}, v{A+2}")
    g(f"v_add_f32 v{A+1}, v{A+1}, v{A+3}")

def dpp(op, d, a, b, ctl):
    return f"{op}_dpp v{d}, v{a}, v{b} {ctl} row_mask:0xf bank_mask:0xf"

def tag_insert(g, R):
    for i in range(4):
        g(f"v_perm_b32 v{R+i}, v{R+i}, v{V_TAG}, s{S_SEL+i}")

def tag_extract(g, R, t0, t1):
    g(f"v_perm_b32 v{t0}, v{R+1}, v{R}, s{S_SELC}")
    g(f"v_perm_b32 v{t1}, v{R+3}, v{R+2}, s{S_SELC}")
    g(f"v_perm_b32 v{t0}, v{t1}, v{t0}, s{S_PLO}")
    g(f"v_xor_b32 v{t0}, v{t0}, v{V_TAG}")

QW, QX, QA, QT = V_ACC, V_S, V_S + 4, V_T
def qproj_issue(g):
    g(f"s_cmp_ge_u32 s{S_W}, 2")
    srd_sel(g, SRD_W, P_AWQ, P_BWQ, 0x400000)
    srd_sel(g, SRD_X, P_AX, P_BX, 1024)
    for i in range(8):
        g(f"buffer_load_dwordx4 v[{QW+4*i}:{QW+4*i+3}], v7, s[{SRD_W}:{SRD_W+3}], s{S_T0} offen")
        if i < 7: g(f"s_add_u32 s{S_T0}, s{S_T0}, 8192")
    g(f"buffer_load_dwordx4 v[{QX}:{QX+3}], v8, s[{SRD_X}:{SRD_X+3}], 0 offen")

def qproj_pre(g):
    g(f"s_lshl_b32 s{S_T0}, s{S_H}, 10")
    g(f"s_lshl_b32 s{S_T0+1}, s{S_S}, 5")
    g(f"s_add_u32 s{S_T0}, s{S_T0}, s{S_T0+1}")
    g(f"s_and_b32 s{S_T0+1}, s{S_W}, 1")
    g(f"s_lshl_b32 s{S_T0+1}, s{S_T0+1}, 4")
    g(f"s_add_u32 s{S_T0}, s{S_T0}, s{S_T0+1}")
    g(f"v_lshlrev_b32 v7, 16, v{V_LANE}")
    g(f"v_lshlrev_b32 v8, 4, v{V_LANE}")

def qproj_addr(g):
    g(f"s_lshr_b32 s{S_A0}, s{S_W}, 1")
    g(f"s_lshl_b32 s{S_A0}, s{S_A0}, 3")
    g(f"s_add_u32 s{S_A0}, s{S_A0}, s{S_H}")
    g(f"s_lshl_b32 s{S_A0}, s{S_A0}, 11")
    g(f"s_lshl_b32 s{S_T0+1}, s{S_S}, 6")
    g(f"s_add_u32 s{S_A0}, s{S_A0}, s{S_T0+1}")
    g(f"s_and_b32 s{S_T0+1}, s{S_W}, 1")
    g(f"s_lshl_b32 s{S_T0+1}, s{S_T0+1}, 5")
    g(f"s_add_u32 s{S_A0}, s{S_A0}, s{S_T0+1}")
    g(f"s_add_u32 s{S_A0}, s{S_A0}, {QOFF}")
    g(f"v_lshrrev_b32 v12, 4, v{V_LANE}")
    g(f"v_lshlrev_b32 v12, 3, v12")
    g(f"s_lshl_b32 s{S_T0+2}, s{S_H}, 11")
    g(f"s_lshl_b32 s{S_T0+1}, s{S_W}, 9")
    g(f"s_add_u32 s{S_T0+2}, s{S_T0+2}, s{S_T0+1}")
    g(f"s_add_u32 s{S_T0+2}, s{S_T0+2}, {QOFF}")
    g(f"s_add_u32 s{S_T0+3}, s{S_T0+2}, 0x4000")
    g(f"v_lshlrev_b32 v13, 3, v{V_LANE}")

def qproj_compute(g):
    dot_rows(g, QW, QX, QA, QT)
    reduce8_rows(g, QA)
    for sh in (8, 4, 2, 1):
        g.nop(1)
        g(dpp("v_add_f32", QA, QA, QA, f"row_ror:{sh}"))
        g(dpp("v_add_f32", QA+1, QA+1, QA+1, f"row_ror:{sh}"))
    g(f"v_cvt_pk_bf16_f32 v{QA}, v{QA}, v{QA+1}")
    g(f"v_mov_b32 v{QA+1}, v{V_TAG}")
    g(f"s_mov_b32 exec_lo, 0x00010001")
    g(f"s_mov_b32 exec_hi, 0x00010001")
    g(f"buffer_store_dwordx2 v[{QA}:{QA+1}], v12, s[{SRD_WS}:{SRD_WS+3}], s{S_A0} offen sc1")
    g("s_mov_b64 exec, -1")

QP = V_S
def qpoll_issue(g):
    g(f"buffer_load_dwordx2 v[{QP}:{QP+1}], v13, s[{SRD_WS}:{SRD_WS+3}], s{S_T0+2} offen sc1")
    g(f"buffer_load_dwordx2 v[{QP+2}:{QP+3}], v13, s[{SRD_WS}:{SRD_WS+3}], s{S_T0+3} offen sc1")
def qpoll_check(g):
    g(f"v_xor_b32 v{QP+4}, v{QP+1}, v{V_TAG}")
    g(f"v_xor_b32 v{QP+5}, v{QP+3}, v{V_TAG}")
    g(f"v_or_b32 v{QP+4}, v{QP+4}, v{QP+5}")
    g(f"v_cmp_ne_u32 vcc, 0, v{QP+4}")

def kv_offsets(g):
    L = V_LANE
    g(f"v_and_b32 v9, 3, v{L}")
    g(f"v_lshlrev_b32 v9, 10, v9")
    g(f"v_bfe_u32 v10, v{L}, 2, 2")
    g(f"v_lshl_add_u32 v9, v10, 8, v9")
    g(f"v_lshrrev_b32 v10, 4, v{L}")
    g(f"v_lshl_add_u32 v{V_KO0}, v10, 4, v9")
    g(f"v_add_u32 v{V_KO1}, 0x1000, v{V_KO0}")
    g(f"v_lshlrev_b32 v{V_VO0}, 4, v{L}")
    g(f"v_add_u32 v{V_VO1}, 0x1000, v{V_VO0}")

def issue_k(g, b):
    r = 32 * b
    for t in range(2):
        for j in range(4):
            g(f"buffer_load_dwordx4 a[{r}:{r+3}], v{V_KO0+t}, s[{SRD_K}:{SRD_K+3}], s{S_KOFF} offen offset:{j*64} {g.pol}")
            r += 4
def issue_v(g, b):
    r = V_B0 + 32 * b
    for t in range(2):
        for j in range(4):
            g(f"buffer_load_dwordx4 v[{r}:{r+3}], v{V_VO0+t}, s[{SRD_V}:{SRD_V+3}], s{S_VOFF} offen offset:{j*1024} {g.pol}")
            r += 4
def issue_kv(g, b):
    issue_k(g, b); issue_v(g, b)
    g(f"s_add_u32 s{S_KOFF}, s{S_KOFF}, 0x8000")
    g(f"s_add_u32 s{S_VOFF}, s{S_VOFF}, 0x8000")

def load_q(g, P):
    for j in range(4):
        g(f"ds_read_b128 v[{V_Q+4*j}:{V_Q+4*j+3}], v9 offset:{L_Q + P*1024 + j*64}")

def init_state(g):
    for i in range(32):
        g(f"v_mov_b32 v{V_ACC+i}, 0")
    g(f"v_mov_b32 v{V_M}, 0xff800000")
    g(f"v_mov_b32 v{V_L}, 0")
    g(f"v_mov_b32 v{V_ML}, 0")

def wo_switch(g):
    g(f"s_cmp_ge_u32 s{S_S}, 16")
    srd_sel(g, SRD_V, P_AWO, P_BWO, 0x400000)
    g(f"v_lshrrev_b32 v7, 4, v{V_LANE}")
    g(f"v_lshlrev_b32 v7, 13, v7")
    g(f"v_and_b32 v8, 15, v{V_LANE}")
    g(f"v_lshl_add_u32 v7, v8, 4, v7")
    g(f"s_lshl_b32 s{S_T0}, s{S_W}, 8")
    g(f"v_add_u32 v{V_VO0}, s{S_T0}, v7")
    g(f"v_add_u32 v{V_VO1}, 0x1000, v{V_VO0}")
    g(f"s_lshl_b32 s{S_VOFF}, s{S_H}, 19")
    g(f"s_and_b32 s{S_T0}, s{S_S}, 15")
    g(f"s_lshl_b32 s{S_T0}, s{S_T0}, 15")
    g(f"s_add_u32 s{S_VOFF}, s{S_VOFF}, s{S_T0}")

def process(g, b, inloop):
    NB = g.nbuf
    K = 32 * b; V = V_B0 + 32 * b
    S = V_S; X = V_X
    g.uid += 1
    u = g.uid
    wait = 16 * NB - 8
    if inloop:
        g(f"s_cmp_ge_u32 s{S_CNT}, 16")
        g(f"s_cselect_b32 s{SRD_K+2}, 0, s{SRD_K+2}")
    g(f"s_waitcnt vmcnt({wait})")
    for j in range(4):
        for t in range(2):
            c = "0" if j == 0 else f"v[{S+4*t}:{S+4*t+3}]"
            g(f"v_mfma_f32_16x16x32_bf16 v[{S+4*t}:{S+4*t+3}], a[{K+16*t+4*j}:{K+16*t+4*j+3}], v[{V_Q+4*j}:{V_Q+4*j+3}], {c}")
    issue_k(g, b)
    g.nop(1)
    for i in range(8): g(f"v_cvt_pk_bf16_f32 v{S+i}, 0, v{S+i}")
    for i in range(8): g(f"v_mul_f32 v{S+i}, s{S_SCALE}, v{S+i}")
    for i in range(8): g(f"v_cvt_pk_bf16_f32 v{S+i}, 0, v{S+i}")
    g(f"v_max3_f32 v{X}, v{S}, v{S+1}, v{S+2}")
    g(f"v_max3_f32 v{X+1}, v{S+3}, v{S+4}, v{S+5}")
    g(f"v_max3_f32 v{X}, v{X}, v{S+6}, v{S+7}")
    g(f"v_max_f32 v{X}, v{X}, v{X+1}")
    g(f"v_cmp_gt_f32 vcc, v{X}, v{V_M}")
    g(f"s_cbranch_vccz L_nors_{u}")
    g(f"v_max_f32 v{X}, v{X}, v{V_M}")
    g(f"v_mov_b32 v{X+1}, v{X}")
    g.nop(2)
    g(f"v_permlane32_swap_b32 v{X}, v{X+1}")
    g(f"v_max_f32 v{X}, v{X}, v{X+1}")
    g(f"v_mov_b32 v{X+1}, v{X}")
    g.nop(2)
    g(f"v_permlane16_swap_b32 v{X}, v{X+1}")
    g(f"v_max_f32 v{X}, v{X}, v{X+1}")
    g(f"v_sub_f32 v{X+1}, v{V_M}, v{X}")
    g(f"v_mul_f32 v{X+1}, s{S_LOG2E}, v{X+1}")
    g(f"v_exp_f32 v{X+1}, v{X+1}")
    g(f"v_mov_b32 v{V_M}, v{X}")
    g(f"v_mul_f32 v{V_ML}, s{S_LOG2E}, v{X}")
    g(f"v_mul_f32 v{V_L}, v{V_L}, v{X+1}")
    for i in range(32):
        g(f"v_mul_f32 v{V_ACC+i}, v{V_ACC+i}, v{X+1}")
    g.lab(f"L_nors_{u}")
    for i in range(8): g(f"v_fma_f32 v{S+i}, v{S+i}, s{S_LOG2E}, -v{V_ML}")
    for i in range(8): g(f"v_exp_f32 v{S+i}, v{S+i}")
    if inloop:
        if b == 17 % NB:
            g(f"s_cmp_lg_u32 s{S_CNT}, 16")
            g(f"s_cbranch_scc1 L_nowo_{u}")
            wo_switch(g)
            g.lab(f"L_nowo_{u}")
        g(f"s_cmp_gt_u32 s{S_CNT}, 16")
        g(f"s_cselect_b32 s{SRD_V+2}, 0, s{SRD_V+2}")
    else:
        g.nop(1)
    for i in range(4): g(f"v_cvt_pk_bf16_f32 v{V_P+i}, v{S+2*i}, v{S+2*i+1}")
    g(f"v_add_f32 v{X}, v{S}, v{S+1}")
    g(f"v_add_f32 v{X+1}, v{S+2}, v{S+3}")
    g(f"v_add_f32 v{X+2}, v{S+4}, v{S+5}")
    g(f"v_add_f32 v{X+3}, v{S+6}, v{S+7}")
    g(f"v_add_f32 v{X}, v{X}, v{X+1}")
    g(f"v_add_f32 v{X+2}, v{X+2}, v{X+3}")
    g(f"v_add_f32 v{X}, v{X}, v{X+2}")
    g(f"v_add_f32 v{V_L}, v{V_L}, v{X}")
    g(f"s_waitcnt vmcnt({wait})")
    def perms(d):
        t = V_T + (d % 4) * 4
        sel = S_PHI if d & 1 else S_PLO
        for ip in range(4):
            g(f"v_perm_b32 v{t+ip}, v{V+(2*ip+1)*4+(d>>1)}, v{V+(2*ip)*4+(d>>1)}, s{sel}")
    def pv(d):
        t = V_T + (d % 4) * 4
        a = V_ACC + 4*d
        g(f"v_mfma_f32_16x16x32_bf16 v[{a}:{a+3}], v[{t}:{t+3}], v[{V_P}:{V_P+3}], v[{a}:{a+3}]")
    perms(0)
    for d in range(8):
        if d < 7: perms(d+1)
        else: g.nop(2)
        pv(d)
    issue_v(g, b)
    g(f"s_add_u32 s{S_KOFF}, s{S_KOFF}, 0x8000")
    g(f"s_add_u32 s{S_VOFF}, s{S_VOFF}, 0x8000")
    g(f"s_add_u32 s{S_CNT}, s{S_CNT}, 1")

def save_partials(g, P):
    X = V_X
    g(f"v_mov_b32 v{X}, v{V_L}")
    g.nop(2)
    g(f"v_permlane32_swap_b32 v{V_L}, v{X}")
    g(f"v_add_f32 v{V_L}, v{V_L}, v{X}")
    g(f"v_mov_b32 v{X}, v{V_L}")
    g.nop(2)
    g(f"v_permlane16_swap_b32 v{V_L}, v{X}")
    g(f"v_add_f32 v{V_L}, v{V_L}, v{X}")
    g("s_mov_b32 exec_lo, 0x000f000f")
    g("s_mov_b32 exec_hi, 0x000f000f")
    for d in range(8):
        g(f"ds_write_b128 v10, v[{V_ACC+4*d}:{V_ACC+4*d+3}] offset:{L_O + P*4*L_OW + d*L_OP}")
    g("s_mov_b64 exec, 15")
    g(f"ds_write_b32 v11, v{V_M} offset:{L_M + P*64}")
    g(f"ds_write_b32 v11, v{V_L} offset:{L_L + P*64}")
    g("s_mov_b64 exec, -1")

def lds_addrs(g):
    L = V_LANE
    g(f"v_and_b32 v7, 3, v{L}")
    g(f"v_lshrrev_b32 v8, 4, v{L}")
    g(f"v_lshlrev_b32 v9, 8, v7")
    g(f"v_lshl_add_u32 v9, v8, 4, v9")
    g(f"v_lshl_add_u32 v10, v7, 2, v8")
    g(f"v_lshlrev_b32 v10, 4, v10")
    g(f"s_mul_i32 s{S_T0}, s{S_W}, {L_OW}")
    g(f"v_add_u32 v10, s{S_T0}, v10")
    g(f"s_lshl_b32 s{S_T0}, s{S_W}, 2")
    g(f"v_lshlrev_b32 v11, 4, v7")
    g(f"v_add_u32 v11, s{S_T0}, v11")

C_ML, C_O, C_GO, C_GM = V_T, V_T+1, V_T+2, V_T+3
def wg_combine_addrs(g):
    g("v_lshrrev_b32 v7, 5, v0")
    g(f"v_lshlrev_b32 v{C_ML}, 4, v7")
    g("v_lshrrev_b32 v12, 7, v0")
    g(f"v_mul_u32_u24 v{C_O}, {4*L_OW}, v12")
    g("v_and_b32 v13, 7, v0")
    g(f"v_mul_u32_u24 v8, {L_OP}, v13")
    g(f"v_add_u32 v{C_O}, v{C_O}, v8")
    g("v_bfe_u32 v8, v0, 3, 4")
    g(f"v_lshl_add_u32 v{C_O}, v8, 4, v{C_O}")
    g(f"v_lshlrev_b32 v{C_GO}, 19, v12")
    g(f"v_lshl_add_u32 v{C_GO}, v8, 12, v{C_GO}")
    g(f"v_lshl_add_u32 v{C_GO}, v13, 4, v{C_GO}")
    g(f"s_lshl_b32 s{S_T0}, s{S_H}, 16")
    g(f"s_lshl_b32 s{S_T0+1}, s{S_S}, 7")
    g(f"s_add_u32 s{S_T0}, s{S_T0}, s{S_T0+1}")
    g(f"s_add_u32 s{S_T0}, s{S_T0}, {REC_O}")
    g(f"v_lshlrev_b32 v{C_GM}, 14, v12")
    g("v_bfe_u32 v8, v0, 5, 2")
    g(f"v_lshl_add_u32 v{C_GM}, v8, 9, v{C_GM}")
    g(f"s_lshl_b32 s{S_T0+1}, s{S_H}, 11")
    g(f"s_lshl_b32 s{S_T0+2}, s{S_S}, 4")
    g(f"s_add_u32 s{S_T0+1}, s{S_T0+1}, s{S_T0+2}")
    g(f"s_add_u32 s{S_T0+1}, s{S_T0+1}, {REC_ML}")

def wg_combine(g):
    A = V_ACC
    g(f"ds_read_b128 v[{A}:{A+3}], v{C_ML} offset:{L_M}")
    g(f"ds_read_b128 v[{A+4}:{A+7}], v{C_ML} offset:{L_L}")
    for w in range(4):
        g(f"ds_read_b128 v[{A+8+4*w}:{A+11+4*w}], v{C_O} offset:{L_O + w*L_OW}")
    M = A + 24
    g(f"v_mov_b32 v{M+2}, v{V_TAG}")
    g(f"v_mov_b32 v{M+3}, v{V_TAG}")
    g("s_waitcnt lgkmcnt(4)")
    g(f"v_max3_f32 v{M}, v{A}, v{A+1}, v{A+2}")
    g(f"v_max_f32 v{M}, v{M}, v{A+3}")
    for w in range(4): g(f"v_sub_f32 v{A+w}, v{A+w}, v{M}")
    for w in range(4): g(f"v_mul_f32 v{A+w}, s{S_LOG2E}, v{A+w}")
    for w in range(4): g(f"v_exp_f32 v{A+w}, v{A+w}")
    g.nop(1)
    g(f"v_mul_f32 v{M+1}, v{A}, v{A+4}")
    for w in range(1, 4): g(f"v_fmac_f32 v{M+1}, v{A+w}, v{A+4+w}")
    g("s_waitcnt lgkmcnt(0)")
    O = A + 28
    for r in range(4): g(f"v_mul_f32 v{O+r}, v{A}, v{A+8+r}")
    for w in range(1, 4):
        for r in range(4): g(f"v_fmac_f32 v{O+r}, v{A+w}, v{A+8+4*w+r}")
    tag_insert(g, O)
    g(f"buffer_store_dwordx4 v[{O}:{O+3}], v{C_GO}, s[{SRD_WS}:{SRD_WS+3}], s{S_T0} offen sc1")
    g("s_mov_b32 exec_lo, 1")
    g("s_mov_b32 exec_hi, 1")
    g(f"buffer_store_dwordx4 v[{M}:{M+3}], v{C_GM}, s[{SRD_WS}:{SRD_WS+3}], s{S_T0+1} offen sc1")
    g("s_mov_b64 exec, -1")

def s2_addrs(g):
    g(f"v_lshrrev_b32 v7, 3, v{V_LANE}")
    g(f"v_and_b32 v8, 7, v{V_LANE}")
    g("v_lshlrev_b32 v12, 9, v7")
    g("v_lshl_add_u32 v12, v8, 4, v12")
    g("v_lshlrev_b32 v13, 6, v7")
    g(f"s_lshr_b32 s{S_T0+2}, s{S_S}, 4")
    g(f"s_lshl_b32 s{S_T0+2}, s{S_T0+2}, 3")
    g(f"s_add_u32 s{S_T0+2}, s{S_T0+2}, s{S_H}")
    g(f"s_lshl_b32 s{S_A0}, s{S_T0+2}, 16")
    g(f"s_and_b32 s{S_T0+3}, s{S_S}, 15")
    g(f"s_lshl_b32 s{S_T0+3}, s{S_T0+3}, 12")
    g(f"s_add_u32 s{S_A0}, s{S_A0}, s{S_T0+3}")
    g(f"s_add_u32 s{S_A0}, s{S_A0}, {REC_O}")
    g(f"s_lshl_b32 s{S_A1}, s{S_T0+2}, 11")
    g(f"s_and_b32 s{S_T0+3}, s{S_S}, 12")
    g(f"s_lshl_b32 s{S_T0+3}, s{S_T0+3}, 7")
    g(f"s_add_u32 s{S_A1}, s{S_A1}, s{S_T0+3}")
    g(f"s_add_u32 s{S_A1}, s{S_A1}, {REC_ML}")

S2_ML = V_Q
S2_O = V_ACC
def s2_poll(g):
    T = V_S
    g(f"s_mov_b32 s{S_SPIN}, {SPIN}")
    g.lab("L_s2poll")
    for i in range(4):
        g(f"buffer_load_dwordx4 v[{S2_ML+4*i}:{S2_ML+4*i+3}], v13, s[{SRD_WS}:{SRD_WS+3}], s{S_A1} offen offset:{16*i} sc1")
    for i in range(4):
        g(f"buffer_load_dwordx4 v[{S2_O+4*i}:{S2_O+4*i+3}], v12, s[{SRD_WS}:{SRD_WS+3}], s{S_A0} offen offset:{128*i} sc1")
    g(f"s_sub_u32 s{S_SPIN}, s{S_SPIN}, 1")
    g("s_waitcnt vmcnt(4)")
    for i in range(4):
        g(f"v_xor_b32 v{T+i}, v{S2_ML+4*i+2}, v{V_TAG}")
    g(f"v_or3_b32 v{T}, v{T}, v{T+1}, v{T+2}")
    for i in range(3):
        g(f"v_xor_b32 v{T+4+i}, v{S2_ML+4*i+3}, v{V_TAG}")
    g(f"v_or3_b32 v{T}, v{T}, v{T+3}, v{T+4}")
    g(f"v_xor_b32 v{T+7}, v{S2_ML+15}, v{V_TAG}")
    g(f"v_or3_b32 v{T}, v{T}, v{T+5}, v{T+6}")
    g(f"v_or_b32 v{T}, v{T}, v{T+7}")
    g("s_waitcnt vmcnt(0)")
    for i in range(4):
        tag_extract(g, S2_O + 4*i, T+1+i, T+5)
    g(f"v_or3_b32 v{T}, v{T}, v{T+1}, v{T+2}")
    g(f"v_or3_b32 v{T}, v{T}, v{T+3}, v{T+4}")
    g(f"v_cmp_ne_u32 vcc, 0, v{T}")
    g(f"s_cmp_eq_u32 s{S_SPIN}, 0")
    g("s_cbranch_scc1 L_s2done")
    g("s_mov_b64 exec, vcc")
    g("s_cbranch_vccnz L_s2poll")
    g.lab("L_s2done")
    g("s_mov_b64 exec, -1")

def allreduce(g, op, r, t):
    g.nop(2)
    g(dpp(op, r, r, r, "row_ror:8"))
    g(f"v_mov_b32 v{t}, v{r}")
    g.nop(2)
    g(f"v_permlane16_swap_b32 v{r}, v{t}")
    g(f"{op} v{r}, v{r}, v{t}")
    g(f"v_mov_b32 v{t}, v{r}")
    g.nop(2)
    g(f"v_permlane32_swap_b32 v{r}, v{t}")
    g(f"{op} v{r}, v{r}, v{t}")

def s2_compute(g):
    ML = S2_ML; O = S2_O
    M = V_ACC + 16; T = M + 1; Ls = M + 2; R = V_ACC + 20
    g(f"v_max3_f32 v{M}, v{ML}, v{ML+4}, v{ML+8}")
    g(f"v_max_f32 v{M}, v{M}, v{ML+12}")
    allreduce(g, "v_max_f32", M, T)
    for i in range(4): g(f"v_sub_f32 v{ML+4*i}, v{ML+4*i}, v{M}")
    for i in range(4): g(f"v_mul_f32 v{ML+4*i}, s{S_LOG2E}, v{ML+4*i}")
    for i in range(4): g(f"v_exp_f32 v{ML+4*i}, v{ML+4*i}")
    g.nop(1)
    g(f"v_mul_f32 v{Ls}, v{ML}, v{ML+1}")
    for r in range(4): g(f"v_mul_f32 v{R+r}, v{ML}, v{O+r}")
    for i in range(1, 4):
        g(f"v_fmac_f32 v{Ls}, v{ML+4*i}, v{ML+4*i+1}")
        for r in range(4): g(f"v_fmac_f32 v{R+r}, v{ML+4*i}, v{O+4*i+r}")
    allreduce(g, "v_add_f32", Ls, T)
    g(f"v_rcp_f32 v{Ls}, v{Ls}")
    g(f"v_permlane32_swap_b32 v{R}, v{R+2}")
    g(f"v_permlane32_swap_b32 v{R+1}, v{R+3}")
    g(f"v_add_f32 v{R}, v{R}, v{R+2}")
    g(f"v_add_f32 v{R+1}, v{R+1}, v{R+3}")
    g.nop(2)
    g(f"v_permlane16_swap_b32 v{R}, v{R+1}")
    g(f"v_add_f32 v{R}, v{R}, v{R+1}")
    g.nop(2)
    g(dpp("v_add_f32", R, R, R, "row_ror:8"))
    g(f"v_mul_f32 v{R}, v{R}, v{Ls}")
    g.nop(2)
    B = V_S
    for d in range(8):
        g(f"v_mov_b32_dpp v{B+d}, v{R} row_newbcast:{d} row_mask:0xf bank_mask:0xf")
    for i in range(4):
        g(f"v_cvt_pk_bf16_f32 v{V_P+i}, v{B+2*i}, v{B+2*i+1}")

def s2_out_addr(g):
    t = S_T0 + 4
    g(f"s_lshr_b32 s{t}, s{S_S}, 4")
    g(f"s_lshl_b32 s{t}, s{t}, 3")
    g(f"s_add_u32 s{t}, s{t}, s{S_H}")
    g(f"s_lshl_b32 s{t}, s{t}, 4")
    g(f"s_and_b32 s{t+1}, s{S_S}, 15")
    g(f"s_add_u32 s{t}, s{t}, s{t+1}")
    g(f"s_lshl_b32 s{t}, s{t}, 11")
    g(f"s_lshl_b32 s{t+1}, s{S_W}, 9")
    g(f"s_add_u32 s{t}, s{t}, s{t+1}")
    g(f"s_add_u32 s{t}, s{t}, {OUTP}")
    g(f"v_and_b32 v15, 15, v{V_LANE}")
    g(f"v_lshlrev_b32 v15, 5, v15")
    g(f"v_lshrrev_b32 v8, 5, v{V_LANE}")
    g(f"v_lshl_add_u32 v15, v8, 4, v15")

def s2_project(g, W):
    A = V_S
    dot_rows(g, W, V_P, A, V_T)
    for d in range(4):
        g(f"v_permlane32_swap_b32 v{A+d}, v{A+d+4}")
    for d in range(4):
        g(f"v_add_f32 v{A+d}, v{A+d}, v{A+d+4}")
    for d in range(4):
        g(f"v_mov_b32 v{A+4+d}, v{A+d}")
    for d in range(4):
        g(f"v_permlane16_swap_b32 v{A+d}, v{A+d+4}")
    for d in range(4):
        g(f"v_add_f32 v{A+d}, v{A+d}, v{A+d+4}")
    tag_insert(g, A)
    g("s_mov_b32 exec_lo, 0xffff")
    g("s_mov_b32 exec_hi, 0xffff")
    g(f"buffer_store_dwordx4 v[{A}:{A+3}], v15, s[{SRD_WS}:{SRD_WS+3}], s{S_T0+4} offen sc1")
    g("s_mov_b64 exec, -1")

S3 = V_ACC
def s3_addrs(g, sj):
    g(f"v_lshrrev_b32 v7, 2, v{V_LANE}")
    g("v_lshlrev_b32 v12, 11, v7")
    g(f"v_and_b32 v8, 3, v{V_LANE}")
    g("v_lshl_add_u32 v12, v8, 4, v12")
    g("v_add_u32 v13, 0x20000, v12")
    g(f"s_lshr_b32 s{S_A0}, s{sj}, 5")
    g(f"s_lshl_b32 s{S_A0}, s{S_A0}, 18")
    g(f"s_and_b32 s{S_T0+1}, s{sj}, 31")
    g(f"s_lshl_b32 s{S_T0+1}, s{S_T0+1}, 6")
    g(f"s_add_u32 s{S_A0}, s{S_A0}, s{S_T0+1}")
    g(f"s_add_u32 s{S_A0}, s{S_A0}, {OUTP}")
    for i in range(1, 4):
        g(f"s_add_u32 s{S_T0+i}, s{S_A0}, {0x8000*i}")
def s3_poll(g):
    T = V_T
    g(f"s_mov_b32 s{S_SPIN}, {SPIN}")
    g.lab("L_s3poll")
    for i in range(8):
        so = S_A0 if i % 4 == 0 else S_T0 + (i % 4)
        g(f"buffer_load_dwordx4 v[{S3+4*i}:{S3+4*i+3}], v{12 + i//4}, s[{SRD_WS}:{SRD_WS+3}], s{so} offen sc1")
    g(f"s_sub_u32 s{S_SPIN}, s{S_SPIN}, 1")
    for i in range(8):
        g(f"s_waitcnt vmcnt({7-i})")
        tag_extract(g, S3 + 4*i, T+i, T+8)
    g(f"v_or3_b32 v{T}, v{T}, v{T+1}, v{T+2}")
    g(f"v_or3_b32 v{T+3}, v{T+3}, v{T+4}, v{T+5}")
    g(f"v_or3_b32 v{T}, v{T}, v{T+6}, v{T+7}")
    g(f"v_or_b32 v{T}, v{T}, v{T+3}")
    g(f"v_cmp_ne_u32 vcc, 0, v{T}")
    g(f"s_cmp_eq_u32 s{S_SPIN}, 0")
    g("s_cbranch_scc1 L_s3done")
    g("s_mov_b64 exec, vcc")
    g("s_cbranch_vccnz L_s3poll")
    g.lab("L_s3done")
    g("s_mov_b64 exec, -1")
def s3_compute(g, sj):
    E = S3
    for st in (16, 8, 4):
        for r in range(st):
            g(f"v_add_f32 v{E+r}, v{E+r}, v{E+st+r}")
    g.nop(2)
    g(f"v_permlane32_swap_b32 v{E}, v{E+2}")
    g(f"v_permlane32_swap_b32 v{E+1}, v{E+3}")
    g(f"v_add_f32 v{E}, v{E}, v{E+2}")
    g(f"v_add_f32 v{E+1}, v{E+1}, v{E+3}")
    g(f"v_mov_b32 v{E+2}, v{E}")
    g(f"v_mov_b32 v{E+3}, v{E+1}")
    g.nop(2)
    g(f"v_permlane16_swap_b32 v{E}, v{E+2}")
    g(f"v_permlane16_swap_b32 v{E+1}, v{E+3}")
    g(f"v_add_f32 v{E}, v{E}, v{E+2}")
    g(f"v_add_f32 v{E+1}, v{E+1}, v{E+3}")
    for sh in (4, 8):
        g.nop(1)
        g(dpp("v_add_f32", E, E, E, f"row_ror:{sh}"))
        g(dpp("v_add_f32", E+1, E+1, E+1, f"row_ror:{sh}"))
    g(f"v_cvt_pk_bf16_f32 v{E}, v{E}, v{E+1}")
    g("s_mov_b32 exec_lo, 15")
    g("s_mov_b32 exec_hi, 15")
    g(f"buffer_store_dword v{E}, v15, s[{SRD_X}:{SRD_X+3}], s{S_T0+5} offen")
    g("s_mov_b64 exec, -1")
def s3_out_addr(g, sj):
    srd(g, SRD_X, P_OUT, 2048)
    g(f"s_lshl_b32 s{S_T0+5}, s{sj}, 5")
    g(f"v_and_b32 v15, 3, v{V_LANE}")
    g("v_lshlrev_b32 v15, 3, v15")
    g(f"v_lshrrev_b32 v8, 5, v{V_LANE}")
    g("v_lshl_add_u32 v15, v8, 2, v15")

def gen(**kw):
    g = G(**kw)
    NB = g.nbuf
    k = NAME + "_kernel"
    g.raw(f"; @launch grid=(256,1,1) block=(256,1,1) lds={LDS_BYTES}")
    g.raw('.amdgcn_target "amdgcn-amd-amdhsa--gfx950"')
    g.raw(".text")
    g.raw(f".globl {k}")
    g.raw(".p2align 8")
    g.raw(f".type {k},@function")
    g.lab(k)
    g("s_cmp_ge_u32 s2, 256")
    g(f"s_cbranch_scc1 L_end")
    g("s_load_dwordx16 s[40:55], s[0:1], 0")
    g("s_load_dwordx8 s[56:63], s[0:1], 64")
    g("s_load_dwordx2 s[64:65], s[0:1], 96")
    stamp(g, 0)
    g("v_lshrrev_b32 v1, 6, v0")
    g(f"v_and_b32 v{V_LANE}, 63, v0")
    g(f"s_and_b32 s{S_H}, s2, 7")
    g(f"v_readfirstlane_b32 s{S_W}, v1")
    g(f"s_lshr_b32 s{S_S}, s2, 3")
    g(f"s_mov_b32 s{S_PLO}, 0x05040100")
    g(f"s_mov_b32 s{S_PHI}, 0x07060302")
    g(f"s_mov_b32 s{S_SCALE}, 0x3db504f3")
    g(f"s_mov_b32 s{S_LOG2E}, 0x3fb8aa3b")
    qproj_pre(g)
    kv_offsets(g)
    g(f"s_lshl_b32 s{S_T0+2}, s{S_H}, 24")
    g(f"s_lshl_b32 s{S_T0+1}, s{S_W}, 13")
    g(f"s_add_u32 s{S_T0+2}, s{S_T0+2}, s{S_T0+1}")
    g(f"s_lshl_b32 s{S_T0+1}, s{S_S}, 15")
    g(f"s_add_u32 s{S_KOFF}, s{S_T0+2}, s{S_T0+1}")
    g(f"s_add_u32 s{S_KOFF}, s{S_KOFF}, {15 << 20}")
    g(f"s_mov_b32 s{S_VOFF}, s{S_KOFF}")
    g(f"s_lshl_b32 s{S_T0+1}, s{S_S}, 19")
    g(f"s_add_u32 s{S_A1}, s{S_T0+2}, s{S_T0+1}")
    g("s_waitcnt lgkmcnt(0)")
    stamp(g, 1)
    qproj_issue(g)
    srd(g, SRD_WS, P_WS, WS_USE)
    g(f"buffer_load_dword v{V_TAG}, off, s[{SRD_WS}:{SRD_WS+3}], 0 sc1")
    srd(g, SRD_K, P_BK, 0x8000000)
    srd(g, SRD_V, P_BV, 0x8000000)
    issue_k(g, 0); issue_v(g, 0)
    g(f"s_mov_b32 s{SRD_K}, s{P_AK}"); g(f"s_mov_b32 s{SRD_K+1}, s{P_AK+1}")
    g(f"s_mov_b32 s{SRD_V}, s{P_AV}"); g(f"s_mov_b32 s{SRD_V+1}, s{P_AV+1}")
    g(f"s_mov_b32 s{S_KOFF}, s{S_A1}")
    g(f"s_mov_b32 s{S_VOFF}, s{S_A1}")
    pre = g.kw.get("pre", 1)
    for b in range(1, pre): issue_kv(g, b)
    qproj_addr(g)
    lds_addrs(g)
    for i in range(4): g(f"s_mov_b32 s{S_SEL+i}, {0x07060500 + i:#x}")
    g(f"s_mov_b32 s{S_SELC}, 0x0c0c0400")
    g(f"s_waitcnt vmcnt({16*pre})")
    stamp(g, 2)
    g(f"v_add_u32 v{V_TAG}, 0x9e3779b9, v{V_TAG}")
    qproj_compute(g)
    stamp(g, 3)
    for b in range(pre, NB):
        qpoll_issue(g)
        issue_kv(g, b)
        if b == pre: init_state(g)
        g("s_waitcnt vmcnt(16)")
        qpoll_check(g)
        g(f"s_cbranch_vccz L_qok{b}")
    if pre == NB: init_state(g)
    g(f"s_mov_b32 s{S_SPIN}, {SPIN}")
    g.lab("L_qpoll")
    qpoll_issue(g)
    g(f"s_sub_u32 s{S_SPIN}, s{S_SPIN}, 1")
    g("s_waitcnt vmcnt(0)")
    qpoll_check(g)
    g(f"s_cmp_eq_u32 s{S_SPIN}, 0")
    g(f"s_cbranch_scc1 L_qok{NB-1}")
    g("s_cbranch_vccnz L_qpoll")
    if NB - pre >= 2:
        g(f"s_branch L_qok{NB-1}")
    for b in range(pre, NB - 1):
        g.lab(f"L_qok{b}")
        issue_kv(g, b + 1)
    g.lab(f"L_qok{NB-1}")
    stamp(g, 4)
    g("v_lshlrev_b32 v7, 2, v0")
    g(f"ds_write_b32 v7, v{QP} offset:{L_Q}")
    g(f"ds_write_b32 v7, v{QP+2} offset:{L_Q+1024}")
    g("s_waitcnt lgkmcnt(0)")
    g("s_barrier")
    load_q(g, 1)
    g(f"s_mov_b32 s{S_CNT}, {NB-1}")
    g("s_waitcnt lgkmcnt(0)")
    stamp(g, 5)
    process(g, 0, False)
    load_q(g, 0)
    g.nop(8)
    save_partials(g, 1)
    init_state(g)
    g("s_waitcnt lgkmcnt(0)")
    g.lab("L_loop")
    order = list(range(1, NB)) + [0]
    for b in order:
        process(g, b, True)
        if b == 16 % NB:
            g(f"s_cmp_eq_u32 s{S_CNT}, {16 + NB}")
            if b == order[-1]:
                g("s_cbranch_scc0 L_loop")
            else:
                g("s_cbranch_scc1 L_loopend")
    if 16 % NB != order[-1]:
        g("s_branch L_loop")
    g.lab("L_loopend")
    stamp(g, 6)
    wg_combine_addrs(g)
    save_partials(g, 0)
    s2_addrs(g)
    s2_out_addr(g)
    g("s_waitcnt lgkmcnt(0)")
    g("s_barrier")
    wg_combine(g)
    stamp(g, 7)
    s2_poll(g)
    stamp(g, 8)
    s2_compute(g)
    s2_project(g, V_B0 + 32 * (17 % NB))
    stamp(g, 9)
    g(f"s_and_b32 s{S_T0}, s{S_S}, 3")
    g(f"s_or_b32 s{S_T0}, s{S_T0}, s{S_W}")
    g(f"s_cmp_lg_u32 s{S_T0}, 0")
    g("s_cbranch_scc1 L_fin")
    g(f"s_lshl_b32 s{S_CNT}, s{S_H}, 3")
    g(f"s_lshr_b32 s{S_T0}, s{S_S}, 2")
    g(f"s_add_u32 s{S_CNT}, s{S_CNT}, s{S_T0}")
    s3_addrs(g, S_CNT)
    s3_out_addr(g, S_CNT)
    s3_poll(g)
    stamp(g, 10)
    s3_compute(g, S_CNT)
    g(f"s_cmp_lg_u32 s{S_CNT}, 0")
    g("s_cbranch_scc1 L_fin")
    g("s_mov_b64 exec, 1")
    g(f"buffer_store_dword v{V_TAG}, off, s[{SRD_WS}:{SRD_WS+3}], 0 sc1")
    g("s_mov_b64 exec, -1")
    g.lab("L_fin")
    stamp(g, 11)
    stamp_flush(g, 12)
    g.lab("L_end")
    g("s_endpgm")
    g.raw('.section .rodata,"a"')
    nv = V_B0 + 32 * NB
    g.raw(".p2align 6")
    g.raw(f".amdhsa_kernel {k}")
    g.raw(f"  .amdhsa_next_free_vgpr {nv + 32*NB}")
    g.raw(f"  .amdhsa_next_free_sgpr 102")
    g.raw(f"  .amdhsa_accum_offset {nv}")
    g.raw("  .amdhsa_group_segment_fixed_size 0")
    g.raw("  .amdhsa_kernarg_size 104")
    g.raw("  .amdhsa_user_sgpr_count 2")
    g.raw("  .amdhsa_user_sgpr_kernarg_segment_ptr 1")
    g.raw("  .amdhsa_system_sgpr_workgroup_id_x 1")
    g.raw(".end_amdhsa_kernel")
    return g.text()

if __name__ == "__main__":
    open("f3.s", "w").write(gen(nbuf=3, pre=1))
    open("f3s.s", "w").write(gen(nbuf=3, pre=1, stamps=True))
    open("f2.s", "w").write(gen(nbuf=2, pre=1))
    open("f2s.s", "w").write(gen(nbuf=2, pre=1, stamps=True))
```

```python
import sys
NAME = "concat_heads__gqa_block_cached__sliding_block_cached__decode"

EPOCH  = 0x0
QOFF   = 0x1000
REC_ML = 0x10000
REC_O  = 0x20000
OUTP   = 0x120000
CNTO   = 0x9000
STAMP  = 0x300000
WS_USE = 0x400000
L_Q  = 0
L_M  = 2048
L_L  = 2048 + 128
L_O  = 2560
L_OP = 272
L_OW = 8 * L_OP
LDS_BYTES = L_O + 8 * L_OW
L_SLOT = LDS_BYTES

class G:
    def __init__(s, **kw):
        s.L = []
        s.pol = kw.get("pol", "nt")
        s.stamps = kw.get("stamps", False)
        s.nbuf = kw.get("nbuf", 3)
        s.kw = kw
        s.uid = 0
        s.late = []
    def __call__(s, x): s.L.append("  " + x)
    def lab(s, x): s.L.append(x + ":")
    def raw(s, x): s.L.append(x)
    def nop(s, n):
        if n > 0: s(f"s_nop {n-1}")
    def text(s): return "\n".join(s.L) + "\n"

S_W, S_H, S_S = 3, 4, 5
S_SPIN = 6
S_VOFF = 7
SRD_K, SRD_V, SRD_WS, SRD_X, SRD_W = 8, 12, 16, 20, 24
S_KOFF = 28
S_CNT = 29
S_PLO, S_PHI, S_SCALE, S_LOG2E = 30, 31, 32, 33
S_T0 = 34
P_AX, P_AK, P_AV, P_AWQ, P_AWO, P_BX, P_BK, P_BV, P_BWQ, P_BWO, P_OUT, P_DBG, P_WS = [40 + 2*i for i in range(13)]
S_SEL = 66
S_SELC = 70
S_A0, S_A1 = 71, 72
S_C, S_HB, S_CO = 73, 74, 75
S_VAL = 100
V_CL = 0
NSTAT = 3 * 128
S_ST = 76
V_LANE = 2
V_KO0, V_KO1, V_VO0, V_VO1 = 3, 4, 5, 6
V_TAG = 14
V_Q = 16
V_ACC = 32
V_S = 64
V_P = 72
V_T = 76
V_M, V_L, V_ML = 88, 89, 90
V_X = 91
V_B0 = 96
SPIN = 1 << 16

def srd(g, r, p, nbytes):
    g(f"s_mov_b32 s{r}, s{p}")
    g(f"s_mov_b32 s{r+1}, s{p+1}")
    g(f"s_mov_b32 s{r+2}, {nbytes:#x}")
    g(f"s_mov_b32 s{r+3}, 0x20000")

def srd_sel(g, r, pa, pb, nbytes):
    g(f"s_cselect_b32 s{r}, s{pb}, s{pa}")
    g(f"s_cselect_b32 s{r+1}, s{pb+1}, s{pa+1}")
    g(f"s_mov_b32 s{r+2}, {nbytes:#x}")
    g(f"s_mov_b32 s{r+3}, 0x20000")

def stamp(g, idx):
    if g.stamps: g(f"s_memrealtime s[{S_ST+2*idx}:{S_ST+2*idx+1}]")

def stamp_flush(g, n):
    if not g.stamps: return
    g("s_waitcnt lgkmcnt(0)")
    if g.kw.get("dbg"):
        srd(g, SRD_X, P_DBG, 256)
        for i in range(12): g(f"v_mov_b32 v{V_ACC+i}, s{S_ST+2*i}")
        for j, i in enumerate((0, 5, 6, 8)): g(f"v_not_b32 v{V_ACC+12+j}, v{V_ACC+i}")
        g("s_mov_b64 exec, 1")
        for i in range(16):
            if i == 10:
                g(f"s_and_b32 s{S_T0}, s{S_S}, 3")
                g(f"s_or_b32 s{S_T0}, s{S_T0}, s{S_W}")
                g(f"s_cmp_lg_u32 s{S_T0}, 0")
                g("s_cbranch_scc1 L_noat10")
            g(f"buffer_atomic_umax v{V_ACC+i}, off, s[{SRD_X}:{SRD_X+3}], 0 offset:{4*i}")
            if i == 10: g.lab("L_noat10")
        g("s_mov_b64 exec, -1")
        return
    g(f"s_lshl_b32 s{S_T0}, s2, 2")
    g(f"s_add_u32 s{S_T0}, s{S_T0}, s{S_W}")
    g(f"s_lshl_b32 s{S_T0}, s{S_T0}, 6")
    g(f"s_add_u32 s{S_T0}, s{S_T0}, {STAMP}")
    for i in range(12): g(f"v_mov_b32 v{V_ACC+i}, s{S_ST+2*i}")
    g(f"s_getreg_b32 s{S_T0+1}, hwreg(HW_REG_HW_ID)")
    g(f"s_getreg_b32 s{S_T0+2}, hwreg(HW_REG_XCC_ID)")
    g(f"v_mov_b32 v{V_ACC+12}, s{S_T0+1}")
    g(f"v_mov_b32 v{V_ACC+13}, s{S_T0+2}")
    g("s_mov_b64 exec, 1")
    for i in range(4):
        g(f"buffer_store_dwordx4 v[{V_ACC+4*i}:{V_ACC+4*i+3}], off, s[{SRD_WS}:{SRD_WS+3}], s{S_T0} offset:{16*i}")
    g("s_mov_b64 exec, -1")
    if g.kw.get("lst"):
        g(f"s_lshl_b32 s{S_T0}, s2, 2")
        g(f"s_add_u32 s{S_T0}, s{S_T0}, s{S_W}")
        g(f"s_lshl_b32 s{S_T0}, s{S_T0}, 7")
        g(f"s_add_u32 s{S_T0}, s{S_T0}, {STAMP + 0x10000}")
        g(f"v_lshlrev_b32 v7, 2, v{V_LANE}")
        g("s_mov_b64 exec, 0xffffffff")
        g(f"buffer_store_dword v1, v7, s[{SRD_WS}:{SRD_WS+3}], s{S_T0} offen")
        g("s_mov_b64 exec, -1")

def dot_rows(g, W, X, A, T):
    k = 0
    for ip in range(4):
        for q in range(4):
            t0 = T + (k % 4) * 2; k += 1
            g(f"v_perm_b32 v{t0}, v{W+(2*ip+1)*4+q}, v{W+(2*ip)*4+q}, s{S_PLO}")
            g(f"v_perm_b32 v{t0+1}, v{W+(2*ip+1)*4+q}, v{W+(2*ip)*4+q}, s{S_PHI}")
            c0 = "0" if ip == 0 else f"v{A+2*q}"
            c1 = "0" if ip == 0 else f"v{A+2*q+1}"
            g(f"v_dot2_f32_bf16 v{A+2*q}, v{t0}, v{X+ip}, {c0}")
            g(f"v_dot2_f32_bf16 v{A+2*q+1}, v{t0+1}, v{X+ip}, {c1}")
    g.nop(3)

def wo_prepermute(g, W):
    for ip in range(4):
        for q in range(4):
            a, b, t = W + (2*ip)*4 + q, W + (2*ip+1)*4 + q, V_T + q
            g(f"v_perm_b32 v{t}, v{b}, v{a}, s{S_PLO}")
            g(f"v_perm_b32 v{b}, v{b}, v{a}, s{S_PHI}")
            g(f"v_mov_b32 v{a}, v{t}")

def dot_pre(g, W, X, A):
    for ip in range(4):
        for q in range(4):
            c0 = "0" if ip == 0 else f"v{A+2*q}"
            c1 = "0" if ip == 0 else f"v{A+2*q+1}"
            g(f"v_dot2_f32_bf16 v{A+2*q}, v{W+(2*ip)*4+q}, v{X+ip}, {c0}")
            g(f"v_dot2_f32_bf16 v{A+2*q+1}, v{W+(2*ip+1)*4+q}, v{X+ip}, {c1}")
    g.nop(3)

def reduce8_rows(g, A):
    for d in range(4):
        g(f"v_permlane32_swap_b32 v{A+d}, v{A+d+4}")
    for d in range(4):
        g(f"v_add_f32 v{A+d}, v{A+d}, v{A+d+4}")
    g.nop(2)
    g(f"v_permlane16_swap_b32 v{A}, v{A+2}")
    g(f"v_permlane16_swap_b32 v{A+1}, v{A+3}")
    g(f"v_add_f32 v{A}, v{A}, v{A+2}")
    g(f"v_add_f32 v{A+1}, v{A+1}, v{A+3}")

def dpp(op, d, a, b, ctl):
    return f"{op}_dpp v{d}, v{a}, v{b} {ctl} row_mask:0xf bank_mask:0xf"

def tag_insert(g, R):
    for i in range(4):
        g(f"v_perm_b32 v{R+i}, v{R+i}, v{V_TAG}, s{S_SEL+i}")

def tag_extract(g, R, t0, t1):
    g(f"v_perm_b32 v{t0}, v{R+1}, v{R}, s{S_SELC}")
    g(f"v_perm_b32 v{t1}, v{R+3}, v{R+2}, s{S_SELC}")
    g(f"v_perm_b32 v{t0}, v{t1}, v{t0}, s{S_PLO}")
    g(f"v_xor_b32 v{t0}, v{t0}, v{V_TAG}")

QW, QX, QA, QT = V_ACC, V_S, V_S + 4, V_T
L_QP = L_O
def qproj_pre(g):
    g(f"s_lshl_b32 s{S_T0}, s{S_H}, 10")
    g(f"s_add_u32 s{S_T0+1}, s{S_S}, {g.kw.get('qrot', 0)}")
    g(f"s_and_b32 s{S_T0+1}, s{S_T0+1}, 15")
    g(f"s_lshl_b32 s{S_T0+1}, s{S_T0+1}, 6")
    g(f"s_add_u32 s{S_T0}, s{S_T0}, s{S_T0+1}")
    g(f"s_lshl_b32 s{S_T0+1}, s{S_W}, 20")
    g(f"s_add_u32 s{S_T0}, s{S_T0}, s{S_T0+1}")
    g(f"v_lshrrev_b32 v8, 2, v{V_LANE}")
    g(f"v_lshlrev_b32 v7, 16, v8")
    g(f"v_and_b32 v9, 3, v{V_LANE}")
    g(f"v_lshl_add_u32 v7, v9, 4, v7")
    g(f"v_lshlrev_b32 v8, 4, v8")
    g(f"s_lshl_b32 s{S_T0+3}, s{S_W}, 8")

def qproj_issue(g):
    wpol = g.kw.get("wpol", "nt")
    g(f"s_cmp_ge_u32 s{S_S}, 16")
    srd_sel(g, SRD_W, P_AWQ, P_BWQ, 0x400000)
    srd_sel(g, SRD_X, P_AX, P_BX, 1024)
    for i in range(8):
        g(f"buffer_load_dwordx4 v[{QW+4*i}:{QW+4*i+3}], v7, s[{SRD_W}:{SRD_W+3}], s{S_T0} offen {wpol}")
        if i < 7: g(f"s_add_u32 s{S_T0}, s{S_T0}, 8192")
    g(f"buffer_load_dwordx4 v[{QX}:{QX+3}], v8, s[{SRD_X}:{SRD_X+3}], s{S_T0+3} offen")

def qproj_addr(g):
    g(f"s_lshr_b32 s{S_A0}, s{S_S}, 4")
    g(f"s_lshl_b32 s{S_A0}, s{S_A0}, 3")
    g(f"s_add_u32 s{S_A0}, s{S_A0}, s{S_H}")
    g(f"s_lshl_b32 s{S_A0}, s{S_A0}, 11")
    g(f"s_and_b32 s{S_T0+1}, s{S_S}, 15")
    g(f"s_lshl_b32 s{S_T0+1}, s{S_T0+1}, 7")
    g(f"s_add_u32 s{S_A0}, s{S_A0}, s{S_T0+1}")
    g(f"s_add_u32 s{S_A0}, s{S_A0}, {QOFF}")
    g(f"v_and_b32 v12, 3, v{V_LANE}")
    g(f"v_lshlrev_b32 v12, 5, v12")
    g(f"v_lshrrev_b32 v13, 4, v{V_LANE}")
    g(f"v_lshl_add_u32 v12, v13, 3, v12")
    g(f"s_lshl_b32 s{S_T0+1}, s{S_W}, 7")
    g(f"v_add_u32 v12, s{S_T0+1}, v12")
    g(f"s_lshl_b32 s{S_T0+2}, s{S_H}, 11")
    g(f"s_lshl_b32 s{S_T0+1}, s{S_W}, 9")
    g(f"s_add_u32 s{S_T0+2}, s{S_T0+2}, s{S_T0+1}")
    g(f"s_add_u32 s{S_T0+2}, s{S_T0+2}, {QOFF}")
    g(f"s_add_u32 s{S_T0+3}, s{S_T0+2}, 0x4000")
    g(f"v_lshlrev_b32 v13, 3, v{V_LANE}")

def qproj_compute(g):
    dot_rows(g, QW, QX, QA, QT)
    reduce8_rows(g, QA)
    for sh in (8, 4):
        g.nop(1)
        g(dpp("v_add_f32", QA, QA, QA, f"row_ror:{sh}"))
        g(dpp("v_add_f32", QA+1, QA+1, QA+1, f"row_ror:{sh}"))
    g(f"s_mov_b32 exec_lo, 0x000f000f")
    g(f"s_mov_b32 exec_hi, 0x000f000f")
    g(f"ds_write_b64 v12, v[{QA}:{QA+1}] offset:{L_QP}")
    g("s_mov_b64 exec, -1")
    g("s_waitcnt lgkmcnt(0)")
    g("s_barrier")
    g(f"s_cmp_lg_u32 s{S_W}, 0")
    g("s_cbranch_scc1 L_nopub")
    g("s_mov_b64 exec, 0xffff")
    T = QT
    for w in range(4):
        g(f"ds_read_b64 v[{T+2*w}:{T+2*w+1}], v13 offset:{L_QP + 128*w}")
    g("s_waitcnt lgkmcnt(0)")
    g(f"v_add_f32 v{T}, v{T}, v{T+2}")
    g(f"v_add_f32 v{T+1}, v{T+1}, v{T+3}")
    g(f"v_add_f32 v{T+4}, v{T+4}, v{T+6}")
    g(f"v_add_f32 v{T+5}, v{T+5}, v{T+7}")
    g(f"v_add_f32 v{T}, v{T}, v{T+4}")
    g(f"v_add_f32 v{T+1}, v{T+1}, v{T+5}")
    g(f"v_cvt_pk_bf16_f32 v{T}, v{T}, v{T+1}")
    g(f"v_mov_b32 v{T+1}, v{V_TAG}")
    g(f"buffer_store_dwordx2 v[{T}:{T+1}], v13, s[{SRD_WS}:{SRD_WS+3}], s{S_A0} offen sc1")
    g("s_mov_b64 exec, -1")
    g.lab("L_nopub")
    if g.kw.get("pubbar", 1): g("s_barrier")

QP = V_S
def qpoll_issue(g):
    g(f"buffer_load_dwordx2 v[{QP}:{QP+1}], v13, s[{SRD_WS}:{SRD_WS+3}], s{S_T0+2} offen sc1")
    g(f"buffer_load_dwordx2 v[{QP+2}:{QP+3}], v13, s[{SRD_WS}:{SRD_WS+3}], s{S_T0+3} offen sc1")
def qpoll_check(g):
    g(f"v_xor_b32 v{QP+4}, v{QP+1}, v{V_TAG}")
    g(f"v_xor_b32 v{QP+5}, v{QP+3}, v{V_TAG}")
    g(f"v_or_b32 v{QP+4}, v{QP+4}, v{QP+5}")
    g(f"v_cmp_ne_u32 vcc, 0, v{QP+4}")
    if g.kw.get("noq"): g("s_mov_b64 vcc, 0")

def kv_offsets(g):
    L = V_LANE
    g(f"v_and_b32 v9, 3, v{L}")
    g(f"v_lshlrev_b32 v9, 10, v9")
    g(f"v_bfe_u32 v10, v{L}, 2, 2")
    g(f"v_lshl_add_u32 v9, v10, 8, v9")
    g(f"v_lshrrev_b32 v10, 4, v{L}")
    g(f"v_lshl_add_u32 v{V_KO0}, v10, 4, v9")
    g(f"v_add_u32 v{V_KO1}, 0x1000, v{V_KO0}")
    g(f"v_lshlrev_b32 v{V_VO0}, 4, v{L}")
    g(f"v_add_u32 v{V_VO1}, 0x1000, v{V_VO0}")

def issue_k(g, b):
    r = 32 * b
    for t in range(2):
        for j in range(4):
            g(f"buffer_load_dwordx4 a[{r}:{r+3}], v{V_KO0+t}, s[{SRD_K}:{SRD_K+3}], s{S_KOFF} offen offset:{j*64} {g.pol}")
            r += 4
def issue_v(g, b):
    r = V_B0 + 32 * b
    for t in range(2):
        for j in range(4):
            g(f"buffer_load_dwordx4 v[{r}:{r+3}], v{V_VO0+t}, s[{SRD_V}:{SRD_V+3}], s{S_VOFF} offen offset:{j*1024} {g.pol}")
            r += 4
def issue_kv(g, b):
    issue_k(g, b); issue_v(g, b)
    g(f"s_add_u32 s{S_KOFF}, s{S_KOFF}, 0x8000")
    g(f"s_add_u32 s{S_VOFF}, s{S_VOFF}, 0x8000")

def load_q(g, P):
    for j in range(4):
        g(f"ds_read_b128 v[{V_Q+4*j}:{V_Q+4*j+3}], v9 offset:{L_Q + P*1024 + j*64}")

def init_state(g):
    for i in range(32):
        g(f"v_mov_b32 v{V_ACC+i}, 0")
    g(f"v_mov_b32 v{V_M}, 0xff800000")
    g(f"v_mov_b32 v{V_L}, 0")
    g(f"v_mov_b32 v{V_ML}, 0")

def wo_switch(g):
    g(f"s_cmp_ge_u32 s{S_S}, 16")
    srd_sel(g, SRD_V, P_AWO, P_BWO, 0x400000)
    g(f"v_lshrrev_b32 v7, 4, v{V_LANE}")
    g(f"v_lshlrev_b32 v7, 13, v7")
    g(f"v_and_b32 v8, 15, v{V_LANE}")
    g(f"v_lshl_add_u32 v7, v8, 4, v7")
    g(f"s_lshl_b32 s{S_T0}, s{S_W}, 8")
    g(f"v_add_u32 v{V_VO0}, s{S_T0}, v7")
    g(f"v_add_u32 v{V_VO1}, 0x1000, v{V_VO0}")
    g(f"s_lshl_b32 s{S_VOFF}, s{S_H}, 19")
    g(f"s_and_b32 s{S_T0}, s{S_S}, 15")
    g(f"s_lshl_b32 s{S_T0}, s{S_T0}, 15")
    g(f"s_add_u32 s{S_VOFF}, s{S_VOFF}, s{S_T0}")

def wo_early(g):
    W = V_B0 + 32 * g.nbuf
    g(f"s_cmp_ge_u32 s{S_S}, 16")
    srd_sel(g, SRD_W, P_AWO, P_BWO, 0x400000)
    g(f"v_lshrrev_b32 v7, 4, v{V_LANE}")
    g(f"v_lshlrev_b32 v7, 13, v7")
    g(f"v_and_b32 v8, 15, v{V_LANE}")
    g(f"v_lshl_add_u32 v7, v8, 4, v7")
    g(f"s_lshl_b32 s{S_T0}, s{S_W}, 8")
    g(f"v_add_u32 v7, s{S_T0}, v7")
    g(f"v_add_u32 v8, 0x1000, v7")
    g(f"s_lshl_b32 s{S_T0+1}, s{S_H}, 19")
    g(f"s_and_b32 s{S_T0}, s{S_S}, 15")
    g(f"s_lshl_b32 s{S_T0}, s{S_T0}, 15")
    g(f"s_add_u32 s{S_T0}, s{S_T0+1}, s{S_T0}")
    for t in range(2):
        for j in range(4):
            r = W + 16*t + 4*j
            g(f"buffer_load_dwordx4 v[{r}:{r+3}], v{7+t}, s[{SRD_W}:{SRD_W+3}], s{S_T0} offen offset:{j*1024} {g.pol}")

def process(g, b, inloop, extra=0, last=0):
    NB = g.nbuf
    K = 32 * b; V = V_B0 + 32 * b
    S = V_S; X = V_X
    g.uid += 1
    u = g.uid
    wait = 16 * NB - 8 + extra
    dyn = g.kw.get("dyn", 0)
    hw = g.kw.get("hw", 0) and inloop
    if dyn:
        if inloop:
            g(f"s_cmp_eq_u32 s{S_VAL+b}, 0")
            g("s_cbranch_scc1 L_loopend")
        g(f"s_waitcnt vmcnt({wait + (1 if inloop else 0)})")
        g(f"v_readfirstlane_b32 s{S_C}, v{V_CL+b}")
        g(f"v_mov_b32 v{V_CL+b}, 1")
    elif hw:
        g(f"s_cmp_eq_u32 s{S_VAL+b}, 0")
        g("s_cbranch_scc1 L_loopend")
        g(f"v_mov_b32 v{X+2}, s{S_CO}")
        if g.kw.get("er", 1): g(f"ds_read_b32 v{X+3}, v{X+2}")
        if g.kw.get("pw", 0):
            g("s_mov_b64 exec, 1")
            g(f"ds_write_b32 v1, v{X+2}")
            g("s_mov_b64 exec, -1")
        g(f"s_waitcnt vmcnt({wait})")
        if not g.kw.get("er", 1): g(f"ds_read_b32 v{X+3}, v{X+2}")
        if not g.kw.get("pw", 0):
            g("s_mov_b64 exec, 1")
            g(f"ds_write_b32 v1, v{X+2}")
            g("s_mov_b64 exec, -1")
    else:
        if inloop and not g.kw.get("pl"):
            g(f"s_cmp_ge_u32 s{S_CNT}, 16")
            g(f"s_cselect_b32 s{SRD_K+2}, 0, s{SRD_K+2}")
        g(f"s_waitcnt vmcnt({wait - 16 * max(last - 1, 0)})")
    for j in range(4):
        for t in range(2):
            c = "0" if j == 0 else f"v[{S+4*t}:{S+4*t+3}]"
            g(f"v_mfma_f32_16x16x32_bf16 v[{S+4*t}:{S+4*t+3}], a[{K+16*t+4*j}:{K+16*t+4*j+3}], v[{V_Q+4*j}:{V_Q+4*j+3}], {c}")
    if dyn:
        fake = g.kw.get("fake", 0)
        if fake:
            g(f"s_sub_u32 s{S_C}, s{S_CNT}, 3")
            g(f"s_lshl_b32 s{S_C}, s{S_C}, 5")
            if fake == 2:
                g(f"s_mul_i32 s{S_T0}, s{S_CNT}, 5")
                g(f"s_cmp_le_u32 s{S_CNT}, 2")
                g(f"s_cselect_b32 s{S_T0}, 0, s{S_T0}")
                g(f"s_add_u32 s{S_T0}, s{S_T0}, s{S_S}")
                g(f"s_and_b32 s{S_T0}, s{S_T0}, 31")
                g(f"s_add_u32 s{S_C}, s{S_C}, s{S_T0}")
                g(f"s_mov_b32 s{SRD_X+2}, 0")
            else:
                g(f"s_add_u32 s{S_C}, s{S_C}, s{S_S}")
        g(f"s_cmp_ge_i32 s{S_C}, {(2048 - NSTAT) // (4 if dyn == 3 else 1)}")
        g(f"s_cselect_b32 s{SRD_K+2}, 0, s{SRD_K+2}")
        g(f"s_mov_b32 s{S_VAL+b}, s{SRD_K+2}")
        g(f"s_min_u32 s{SRD_X+2}, s{SRD_X+2}, s{SRD_K+2}")
        if dyn >= 2:
            g(f"s_ashr_i32 s{S_KOFF}, s{S_C}, 5")
            g(f"s_lshl_b32 s{S_KOFF}, s{S_KOFF}, {15 if dyn == 3 else 13}")
            g(f"s_and_b32 s{S_C}, s{S_C}, 31")
            g(f"s_lshl_b32 s{S_C}, s{S_C}, 19")
            g(f"s_add_u32 s{S_KOFF}, s{S_KOFF}, s{S_C}")
        else:
            g(f"s_lshl_b32 s{S_KOFF}, s{S_C}, 13")
        g(f"s_add_u32 s{S_KOFF}, s{S_KOFF}, s{S_HB}")
        g("s_mov_b64 exec, 1")
        g(f"buffer_atomic_add v{V_CL+b}, off, s[{SRD_X}:{SRD_X+3}], s{S_CO} sc0 sc1")
        g("s_mov_b64 exec, -1")
    if hw:
        g("s_waitcnt lgkmcnt(0)")
        g(f"v_readfirstlane_b32 s{S_C}, v{X+3}")
        g(f"s_cmp_eq_u32 s{S_C}, 0")
        g(f"s_cbranch_scc1 L_slow_{u}")
        g.lab(f"L_back_{u}")
        g(f"s_and_b32 s{S_VAL+b}, s{S_C}, 1")
        g(f"s_cselect_b32 s{SRD_K+2}, 0x8000000, 0")
        g(f"s_and_b32 s{S_KOFF}, s{S_C}, 0xff8000")
        g(f"s_add_u32 s{S_KOFF}, s{S_KOFF}, s{S_HB}")
        g(f"s_lshl2_add_u32 s{S_CO}, s{S_VAL+b}, s{S_CO}")
        g.late += [f"L_slow_{u}:", f"  s_mov_b32 s{S_SPIN}, {SPIN}", f"L_slowl_{u}:",
                   f"  ds_read_b32 v{X+3}, v{X+2}", f"  s_sub_u32 s{S_SPIN}, s{S_SPIN}, 1", "  s_waitcnt lgkmcnt(0)",
                   f"  v_readfirstlane_b32 s{S_C}, v{X+3}", f"  s_cmp_eq_u32 s{S_SPIN}, 0",
                   f"  s_cselect_b32 s{S_C}, 2, s{S_C}", f"  s_cmp_eq_u32 s{S_C}, 0",
                   f"  s_cbranch_scc1 L_slowl_{u}", f"  s_branch L_back_{u}"]
    if last: g.nop(8)
    else: issue_k(g, b)
    g.nop(1)
    for i in range(8): g(f"v_cvt_pk_bf16_f32 v{S+i}, 0, v{S+i}")
    for i in range(8): g(f"v_mul_f32 v{S+i}, s{S_SCALE}, v{S+i}")
    for i in range(8): g(f"v_cvt_pk_bf16_f32 v{S+i}, 0, v{S+i}")
    g(f"v_max3_f32 v{X}, v{S}, v{S+1}, v{S+2}")
    g(f"v_max3_f32 v{X+1}, v{S+3}, v{S+4}, v{S+5}")
    g(f"v_max3_f32 v{X}, v{X}, v{S+6}, v{S+7}")
    g(f"v_max_f32 v{X}, v{X}, v{X+1}")
    g(f"v_cmp_gt_f32 vcc, v{X}, v{V_M}")
    g(f"s_cbranch_vccz L_nors_{u}")
    g(f"v_max_f32 v{X}, v{X}, v{V_M}")
    g(f"v_mov_b32 v{X+1}, v{X}")
    g.nop(2)
    g(f"v_permlane32_swap_b32 v{X}, v{X+1}")
    g(f"v_max_f32 v{X}, v{X}, v{X+1}")
    g(f"v_mov_b32 v{X+1}, v{X}")
    g.nop(2)
    g(f"v_permlane16_swap_b32 v{X}, v{X+1}")
    g(f"v_max_f32 v{X}, v{X}, v{X+1}")
    g(f"v_sub_f32 v{X+1}, v{V_M}, v{X}")
    g(f"v_mul_f32 v{X+1}, s{S_LOG2E}, v{X+1}")
    g(f"v_exp_f32 v{X+1}, v{X+1}")
    g(f"v_mov_b32 v{V_M}, v{X}")
    g(f"v_mul_f32 v{V_ML}, s{S_LOG2E}, v{X}")
    g(f"v_mul_f32 v{V_L}, v{V_L}, v{X+1}")
    for i in range(32):
        g(f"v_mul_f32 v{V_ACC+i}, v{V_ACC+i}, v{X+1}")
    g.lab(f"L_nors_{u}")
    for i in range(8): g(f"v_fma_f32 v{S+i}, v{S+i}, s{S_LOG2E}, -v{V_ML}")
    for i in range(8): g(f"v_exp_f32 v{S+i}, v{S+i}")
    if dyn or hw:
        g(f"s_mov_b32 s{SRD_V+2}, s{SRD_K+2}")
        g(f"s_mov_b32 s{S_VOFF}, s{S_KOFF}")
    elif inloop and not g.kw.get("pl"):
        if g.kw.get("woearly", 1):
            g(f"s_cmp_ge_u32 s{S_CNT}, 16")
        else:
            if b == 17 % NB:
                g(f"s_cmp_lg_u32 s{S_CNT}, 16")
                g(f"s_cbranch_scc1 L_nowo_{u}")
                wo_switch(g)
                g.lab(f"L_nowo_{u}")
            g(f"s_cmp_gt_u32 s{S_CNT}, 16")
        g(f"s_cselect_b32 s{SRD_V+2}, 0, s{SRD_V+2}")
    else:
        g.nop(1)
    for i in range(4): g(f"v_cvt_pk_bf16_f32 v{V_P+i}, v{S+2*i}, v{S+2*i+1}")
    g(f"v_add_f32 v{X}, v{S}, v{S+1}")
    g(f"v_add_f32 v{X+1}, v{S+2}, v{S+3}")
    g(f"v_add_f32 v{X+2}, v{S+4}, v{S+5}")
    g(f"v_add_f32 v{X+3}, v{S+6}, v{S+7}")
    g(f"v_add_f32 v{X}, v{X}, v{X+1}")
    g(f"v_add_f32 v{X+2}, v{X+2}, v{X+3}")
    g(f"v_add_f32 v{X}, v{X}, v{X+2}")
    g(f"v_add_f32 v{V_L}, v{V_L}, v{X}")
    if last: wait -= 8 + 16 * (last - 1)
    g(f"s_waitcnt vmcnt({wait + (0 if not dyn else 2 if inloop else 1)})")
    def perms(d):
        t = V_T + (d % 3) * 4
        sel = S_PHI if d & 1 else S_PLO
        for ip in range(4):
            g(f"v_perm_b32 v{t+ip}, v{V+(2*ip+1)*4+(d>>1)}, v{V+(2*ip)*4+(d>>1)}, s{sel}")
    def pv(d):
        t = V_T + (d % 3) * 4
        a = V_ACC + 4*d
        g(f"v_mfma_f32_16x16x32_bf16 v[{a}:{a+3}], v[{t}:{t+3}], v[{V_P}:{V_P+3}], v[{a}:{a+3}]")
    perms(0)
    for d in range(8):
        if d < 7: perms(d+1)
        else: g.nop(2)
        pv(d)
    if last:
        if last == 2: g.nop(8); g.nop(4)
        return
    issue_v(g, b)
    if hw: return
    if not dyn:
        g(f"s_add_u32 s{S_KOFF}, s{S_KOFF}, 0x8000")
        g(f"s_add_u32 s{S_VOFF}, s{S_VOFF}, 0x8000")
    if g.kw.get("lst"):
        g(f"s_memrealtime s[{S_ST+22}:{S_ST+23}]")
        g("s_waitcnt lgkmcnt(0)")
        g(f"s_mov_b32 m0, s{S_CNT}")
        g(f"v_writelane_b32 v1, s{S_ST+22}, m0")
    if not dyn or g.kw.get("lst") or g.kw.get("fake"): g(f"s_add_u32 s{S_CNT}, s{S_CNT}, 1")

def save_partials(g, P):
    X = V_X
    g(f"v_mov_b32 v{X}, v{V_L}")
    g.nop(2)
    g(f"v_permlane32_swap_b32 v{V_L}, v{X}")
    g(f"v_add_f32 v{V_L}, v{V_L}, v{X}")
    g(f"v_mov_b32 v{X}, v{V_L}")
    g.nop(2)
    g(f"v_permlane16_swap_b32 v{V_L}, v{X}")
    g(f"v_add_f32 v{V_L}, v{V_L}, v{X}")
    g("s_mov_b32 exec_lo, 0x000f000f")
    g("s_mov_b32 exec_hi, 0x000f000f")
    g.nop(4)
    for d in range(8):
        g(f"ds_write_b128 v10, v[{V_ACC+4*d}:{V_ACC+4*d+3}] offset:{L_O + P*4*L_OW + d*L_OP}")
    g("s_mov_b64 exec, 15")
    g(f"ds_write_b32 v11, v{V_M} offset:{L_M + P*64}")
    g(f"ds_write_b32 v11, v{V_L} offset:{L_L + P*64}")
    g("s_mov_b64 exec, -1")

def lds_addrs(g):
    L = V_LANE
    g(f"v_and_b32 v7, 3, v{L}")
    g(f"v_lshrrev_b32 v8, 4, v{L}")
    g(f"v_lshlrev_b32 v9, 8, v7")
    g(f"v_lshl_add_u32 v9, v8, 4, v9")
    g(f"v_lshl_add_u32 v10, v7, 2, v8")
    g(f"v_lshlrev_b32 v10, 4, v10")
    g(f"s_mul_i32 s{S_T0}, s{S_W}, {L_OW}")
    g(f"v_add_u32 v10, s{S_T0}, v10")
    g(f"s_lshl_b32 s{S_T0}, s{S_W}, 2")
    g(f"v_lshlrev_b32 v11, 4, v7")
    g(f"v_add_u32 v11, s{S_T0}, v11")

C_ML, C_O, C_GO = 0, 8, 95
def wg_combine_addrs(g, P):
    L = V_LANE
    g(f"s_lshl_b32 s{S_T0}, s{S_W}, 4")
    g(f"v_mov_b32 v{C_ML}, s{S_T0}")
    g(f"v_and_b32 v13, 7, v{L}")
    g(f"v_mul_u32_u24 v{C_O}, {L_OP}, v13")
    g(f"v_bfe_u32 v12, v{L}, 3, 2")
    g(f"v_lshl_add_u32 v{C_O}, v12, 4, v{C_O}")
    g(f"s_lshl_b32 s{S_T0}, s{S_W}, 6")
    g(f"v_add_u32 v{C_O}, s{S_T0}, v{C_O}")
    g(f"v_lshlrev_b32 v{C_GO}, 12, v12")
    g(f"v_lshl_add_u32 v{C_GO}, v13, 4, v{C_GO}")
    g(f"s_lshl_b32 s{S_T0}, s{S_H}, 16")
    g(f"s_lshl_b32 s{S_T0+1}, s{S_S}, 7")
    g(f"s_add_u32 s{S_T0}, s{S_T0}, s{S_T0+1}")
    g(f"s_lshl_b32 s{S_T0+1}, s{S_W}, 14")
    g(f"s_add_u32 s{S_T0}, s{S_T0}, s{S_T0+1}")
    g(f"s_add_u32 s{S_T0}, s{S_T0}, {REC_O + (P << 19)}")
    g(f"s_lshl_b32 s{S_T0+1}, s{S_H}, 11")
    g(f"s_lshl_b32 s{S_T0+2}, s{S_S}, 4")
    g(f"s_add_u32 s{S_T0+1}, s{S_T0+1}, s{S_T0+2}")
    g(f"s_lshl_b32 s{S_T0+2}, s{S_W}, 9")
    g(f"s_add_u32 s{S_T0+1}, s{S_T0+1}, s{S_T0+2}")
    g(f"s_add_u32 s{S_T0+1}, s{S_T0+1}, {REC_ML + (P << 14)}")

def wg_combine(g, P):
    A = V_ACC
    g(f"ds_read_b128 v[{A}:{A+3}], v{C_ML} offset:{L_M + P*64}")
    g(f"ds_read_b128 v[{A+4}:{A+7}], v{C_ML} offset:{L_L + P*64}")
    for w in range(4):
        g(f"ds_read_b128 v[{A+8+4*w}:{A+11+4*w}], v{C_O} offset:{L_O + (P*4 + w)*L_OW}")
    M = V_S + 4
    g(f"v_mov_b32 v{M+2}, v{V_TAG}")
    g(f"v_mov_b32 v{M+3}, v{V_TAG}")
    g("s_waitcnt lgkmcnt(4)")
    g(f"v_max3_f32 v{M}, v{A}, v{A+1}, v{A+2}")
    g(f"v_max_f32 v{M}, v{M}, v{A+3}")
    for w in range(4): g(f"v_sub_f32 v{A+w}, v{A+w}, v{M}")
    for w in range(4): g(f"v_mul_f32 v{A+w}, s{S_LOG2E}, v{A+w}")
    for w in range(4): g(f"v_exp_f32 v{A+w}, v{A+w}")
    g.nop(1)
    g(f"v_mul_f32 v{M+1}, v{A}, v{A+4}")
    for w in range(1, 4): g(f"v_fmac_f32 v{M+1}, v{A+w}, v{A+4+w}")
    g("s_waitcnt lgkmcnt(0)")
    O = V_S
    for r in range(4): g(f"v_mul_f32 v{O+r}, v{A}, v{A+8+r}")
    for w in range(1, 4):
        for r in range(4): g(f"v_fmac_f32 v{O+r}, v{A+w}, v{A+8+4*w+r}")
    tag_insert(g, O)
    g("s_mov_b32 exec_hi, 0")
    g(f"buffer_store_dwordx4 v[{O}:{O+3}], v{C_GO}, s[{SRD_WS}:{SRD_WS+3}], s{S_T0} offen sc1")
    g("s_mov_b32 exec_lo, 1")
    g(f"buffer_store_dwordx4 v[{M}:{M+3}], off, s[{SRD_WS}:{SRD_WS+3}], s{S_T0+1} sc1")
    g("s_mov_b64 exec, -1")

L_ST = L_O + 4 * L_OW
def s2_addrs(g):
    g(f"v_lshlrev_b32 v12, 4, v{V_LANE}")
    g(f"v_lshrrev_b32 v13, 3, v{V_LANE}")
    g("v_lshlrev_b32 v13, 4, v13")
    g(f"s_lshr_b32 s{S_T0+2}, s{S_S}, 4")
    g(f"s_lshl_b32 s{S_T0+2}, s{S_T0+2}, 3")
    g(f"s_add_u32 s{S_T0+2}, s{S_T0+2}, s{S_H}")
    g(f"s_lshl_b32 s{S_A0}, s{S_T0+2}, 16")
    g(f"s_and_b32 s{S_T0+3}, s{S_S}, 15")
    g(f"s_lshl_b32 s{S_T0+3}, s{S_T0+3}, 12")
    g(f"s_add_u32 s{S_A0}, s{S_A0}, s{S_T0+3}")
    g(f"s_lshl_b32 s{S_T0+3}, s{S_W}, 10")
    g(f"s_add_u32 s{S_A0}, s{S_A0}, s{S_T0+3}")
    g(f"v_add_u32 v7, s{S_T0+3}, v12")
    g(f"s_add_u32 s{S_A0}, s{S_A0}, {REC_O}")
    g(f"s_lshl_b32 s{S_A1}, s{S_T0+2}, 11")
    g(f"s_and_b32 s{S_T0+3}, s{S_S}, 12")
    g(f"s_lshl_b32 s{S_T0+3}, s{S_T0+3}, 7")
    g(f"s_add_u32 s{S_A1}, s{S_A1}, s{S_T0+3}")
    g(f"s_lshl_b32 s{S_T0+3}, s{S_W}, 7")
    g(f"s_add_u32 s{S_A1}, s{S_A1}, s{S_T0+3}")
    g(f"v_add_u32 v9, s{S_T0+3}, v13")
    g(f"s_add_u32 s{S_A1}, s{S_A1}, {REC_ML}")

S2_ML = V_Q
S2_O = V_ACC
def s2_poll(g):
    T = V_T
    O, ML = V_B0, V_B0 + 4
    pd = g.kw.get("pd", 1)
    def issue():
        g(f"buffer_load_dwordx4 v[{O}:{O+3}], v12, s[{SRD_WS}:{SRD_WS+3}], s{S_A0} offen sc1")
        g(f"buffer_load_dwordx4 v[{ML}:{ML+3}], v13, s[{SRD_WS}:{SRD_WS+3}], s{S_A1} offen sc1")
    g(f"s_mov_b32 s{S_SPIN}, {g.kw.get('s2spin', SPIN)}")
    for i in range(pd - 1): issue()
    g.lab("L_s2poll")
    issue()
    g(f"s_sub_u32 s{S_SPIN}, s{S_SPIN}, 1")
    g(f"s_waitcnt vmcnt({2*pd - 2})")
    tag_extract(g, O, T, T+1)
    g(f"v_xor_b32 v{T+1}, v{ML+2}, v{V_TAG}")
    g(f"v_xor_b32 v{T+2}, v{ML+3}, v{V_TAG}")
    g(f"v_or3_b32 v{T}, v{T}, v{T+1}, v{T+2}")
    g(f"v_cmp_ne_u32 vcc, 0, v{T}")
    g(f"s_cmp_eq_u32 s{S_SPIN}, 0")
    g("s_cbranch_scc1 L_s2done")
    g("s_mov_b64 exec, vcc")
    thr = g.kw.get("thr", 0)
    if thr:
        g("s_cbranch_vccz L_s2done")
        g.lab("L_s2ml")
        g(f"s_bcnt1_i32_b64 s{S_C}, vcc")
        g(f"s_cmp_le_u32 s{S_C}, {8*thr}")
        g("s_cbranch_scc1 L_s2poll")
        g(f"buffer_load_dwordx4 v[{ML}:{ML+3}], v13, s[{SRD_WS}:{SRD_WS+3}], s{S_A1} offen sc1")
        g(f"s_sub_u32 s{S_SPIN}, s{S_SPIN}, 1")
        g("s_waitcnt vmcnt(0)")
        g(f"v_cmp_ne_u32 vcc, v{ML+3}, v{V_TAG}")
        g(f"s_cmp_lg_u32 s{S_SPIN}, 0")
        g("s_cbranch_scc1 L_s2ml")
    else:
        g("s_cbranch_vccnz L_s2poll")
    g.lab("L_s2done")
    g("s_mov_b64 exec, -1")
    g(f"ds_write_b128 v7, v[{O}:{O+3}] offset:{L_ST}")
    g(f"ds_write_b64 v9, v[{ML}:{ML+1}] offset:{L_ST + 4096}")
    g("s_waitcnt lgkmcnt(0)")
    g("s_barrier")
    for i in range(4):
        g(f"ds_read_b64 v[{S2_ML+4*i}:{S2_ML+4*i+1}], v13 offset:{L_ST + 4096 + 128*i}")
    for i in range(4):
        g(f"ds_read_b128 v[{S2_O+4*i}:{S2_O+4*i+3}], v12 offset:{L_ST + 1024*i}")
    g("s_waitcnt lgkmcnt(4)")

def allreduce(g, op, r, t):
    g.nop(2)
    g(dpp(op, r, r, r, "row_ror:8"))
    g(f"v_mov_b32 v{t}, v{r}")
    g.nop(2)
    g(f"v_permlane16_swap_b32 v{r}, v{t}")
    g(f"{op} v{r}, v{r}, v{t}")
    g(f"v_mov_b32 v{t}, v{r}")
    g.nop(2)
    g(f"v_permlane32_swap_b32 v{r}, v{t}")
    g(f"{op} v{r}, v{r}, v{t}")

def s2_compute(g):
    ML = S2_ML; O = S2_O
    M = V_ACC + 16; T = M + 1; Ls = M + 2; R = V_ACC + 20
    g(f"v_max3_f32 v{M}, v{ML}, v{ML+4}, v{ML+8}")
    g(f"v_max_f32 v{M}, v{M}, v{ML+12}")
    allreduce(g, "v_max_f32", M, T)
    for i in range(4): g(f"v_sub_f32 v{ML+4*i}, v{ML+4*i}, v{M}")
    for i in range(4): g(f"v_mul_f32 v{ML+4*i}, s{S_LOG2E}, v{ML+4*i}")
    for i in range(4): g(f"v_exp_f32 v{ML+4*i}, v{ML+4*i}")
    g("s_waitcnt lgkmcnt(0)")
    g(f"v_mul_f32 v{Ls}, v{ML}, v{ML+1}")
    for r in range(4): g(f"v_mul_f32 v{R+r}, v{ML}, v{O+r}")
    for i in range(1, 4):
        g(f"v_fmac_f32 v{Ls}, v{ML+4*i}, v{ML+4*i+1}")
        for r in range(4): g(f"v_fmac_f32 v{R+r}, v{ML+4*i}, v{O+4*i+r}")
    allreduce(g, "v_add_f32", Ls, T)
    g(f"v_rcp_f32 v{Ls}, v{Ls}")
    g(f"v_permlane32_swap_b32 v{R}, v{R+2}")
    g(f"v_permlane32_swap_b32 v{R+1}, v{R+3}")
    g(f"v_add_f32 v{R}, v{R}, v{R+2}")
    g(f"v_add_f32 v{R+1}, v{R+1}, v{R+3}")
    g.nop(2)
    g(f"v_permlane16_swap_b32 v{R}, v{R+1}")
    g(f"v_add_f32 v{R}, v{R}, v{R+1}")
    g.nop(2)
    g(dpp("v_add_f32", R, R, R, "row_ror:8"))
    g(f"v_mul_f32 v{R}, v{R}, v{Ls}")
    g.nop(2)
    B = V_S
    for d in range(8):
        g(f"v_mov_b32_dpp v{B+d}, v{R} row_newbcast:{d} row_mask:0xf bank_mask:0xf")
    for i in range(4):
        g(f"v_cvt_pk_bf16_f32 v{V_P+i}, v{B+2*i}, v{B+2*i+1}")

def s2_out_addr(g):
    t = S_T0 + 4
    if g.kw.get("ol"):
        g(f"s_lshr_b32 s{t}, s{S_S}, 4")
        g(f"s_lshl_b32 s{t}, s{t}, 18")
        g(f"s_lshl_b32 s{t+1}, s{S_W}, 16")
        g(f"s_add_u32 s{t}, s{t}, s{t+1}")
        g(f"s_lshl_b32 s{t+1}, s{S_H}, 10")
        g(f"s_add_u32 s{t}, s{t}, s{t+1}")
        g(f"s_and_b32 s{t+1}, s{S_S}, 15")
        g(f"s_lshl_b32 s{t+1}, s{t+1}, 6")
        g(f"s_add_u32 s{t}, s{t}, s{t+1}")
        g(f"s_add_u32 s{t}, s{t}, {OUTP}")
        g(f"v_bfe_u32 v15, v{V_LANE}, 1, 3")
        g(f"v_lshlrev_b32 v15, 13, v15")
        g(f"v_and_b32 v{V_T}, 1, v{V_LANE}")
        g(f"v_lshl_add_u32 v15, v{V_T}, 5, v15")
        g(f"v_lshrrev_b32 v{V_T}, 5, v{V_LANE}")
        g(f"v_lshl_add_u32 v15, v{V_T}, 4, v15")
        return
    g(f"s_lshr_b32 s{t}, s{S_S}, 4")
    g(f"s_lshl_b32 s{t}, s{t}, 3")
    g(f"s_add_u32 s{t}, s{t}, s{S_H}")
    g(f"s_lshl_b32 s{t}, s{t}, 4")
    g(f"s_and_b32 s{t+1}, s{S_S}, 15")
    g(f"s_add_u32 s{t}, s{t}, s{t+1}")
    g(f"s_lshl_b32 s{t}, s{t}, 11")
    g(f"s_lshl_b32 s{t+1}, s{S_W}, 9")
    g(f"s_add_u32 s{t}, s{t}, s{t+1}")
    g(f"s_add_u32 s{t}, s{t}, {OUTP}")
    g(f"v_and_b32 v15, 15, v{V_LANE}")
    g(f"v_lshlrev_b32 v15, 5, v15")
    g(f"v_lshrrev_b32 v{V_T}, 5, v{V_LANE}")
    g(f"v_lshl_add_u32 v15, v{V_T}, 4, v15")

def s2_project(g, W):
    A = V_S
    dot_pre(g, W, V_P, A)
    for d in range(4):
        g(f"v_permlane32_swap_b32 v{A+d}, v{A+d+4}")
    for d in range(4):
        g(f"v_add_f32 v{A+d}, v{A+d}, v{A+d+4}")
    for d in range(4):
        g(f"v_mov_b32 v{A+4+d}, v{A+d}")
    for d in range(4):
        g(f"v_permlane16_swap_b32 v{A+d}, v{A+d+4}")
    for d in range(4):
        g(f"v_add_f32 v{A+d}, v{A+d}, v{A+d+4}")
    tag_insert(g, A)
    g("s_mov_b32 exec_lo, 0xffff")
    g("s_mov_b32 exec_hi, 0xffff")
    g(f"buffer_store_dwordx4 v[{A}:{A+3}], v15, s[{SRD_WS}:{SRD_WS+3}], s{S_T0+4} offen sc1")
    g("s_mov_b64 exec, -1")

S3 = V_B0 + 32
def s3_addrs(g, sj):
    if g.kw.get("ol"):
        g(f"v_lshlrev_b32 v12, 4, v{V_LANE}")
        g("v_add_u32 v13, 0x1000, v12")
        g(f"s_lshl_b32 s{S_A0}, s{sj}, 13")
        g(f"s_add_u32 s{S_A0}, s{S_A0}, {OUTP}")
        for i in range(1, 4):
            g(f"s_add_u32 s{S_T0+i}, s{S_A0}, {0x400*i}")
        return
    g(f"v_lshrrev_b32 v7, 2, v{V_LANE}")
    g("v_lshlrev_b32 v12, 11, v7")
    g(f"v_and_b32 v8, 3, v{V_LANE}")
    g("v_lshl_add_u32 v12, v8, 4, v12")
    g("v_add_u32 v13, 0x20000, v12")
    g(f"s_lshr_b32 s{S_A0}, s{sj}, 5")
    g(f"s_lshl_b32 s{S_A0}, s{S_A0}, 18")
    g(f"s_and_b32 s{S_T0+1}, s{sj}, 31")
    g(f"s_lshl_b32 s{S_T0+1}, s{S_T0+1}, 6")
    g(f"s_add_u32 s{S_A0}, s{S_A0}, s{S_T0+1}")
    g(f"s_add_u32 s{S_A0}, s{S_A0}, {OUTP}")
    for i in range(1, 4):
        g(f"s_add_u32 s{S_T0+i}, s{S_A0}, {0x8000*i}")
S_MK = 40
def s3_poll(g):
    T = V_T
    pd = g.kw.get("pd3", 1)
    def issue(masked):
        for i in range(8):
            so = S_A0 if i % 4 == 0 else S_T0 + (i % 4)
            if masked: g(f"s_mov_b64 exec, s[{S_MK+2*i}:{S_MK+2*i+1}]")
            g(f"buffer_load_dwordx4 v[{S3+4*i}:{S3+4*i+3}], v{12 + i//4}, s[{SRD_WS}:{SRD_WS+3}], s{so} offen sc1")
    g(f"s_mov_b32 s{S_SPIN}, {SPIN}")
    for i in range(8): g(f"s_mov_b64 s[{S_MK+2*i}:{S_MK+2*i+1}], -1")
    for i in range(pd - 1): issue(False)
    g.lab("L_s3poll")
    issue(True)
    g("s_mov_b64 exec, -1")
    g(f"s_sub_u32 s{S_SPIN}, s{S_SPIN}, 1")
    for i in range(8):
        g(f"s_waitcnt vmcnt({8*pd - 1 - i})")
        tag_extract(g, S3 + 4*i, T+i, T+8)
        g(f"v_cmp_ne_u32 s[{S_MK+2*i}:{S_MK+2*i+1}], 0, v{T+i}")
    g(f"v_or3_b32 v{T}, v{T}, v{T+1}, v{T+2}")
    g(f"v_or3_b32 v{T+3}, v{T+3}, v{T+4}, v{T+5}")
    g(f"v_or3_b32 v{T}, v{T}, v{T+6}, v{T+7}")
    g(f"v_or_b32 v{T}, v{T}, v{T+3}")
    g(f"v_cmp_ne_u32 vcc, 0, v{T}")
    g(f"s_cmp_eq_u32 s{S_SPIN}, 0")
    g("s_cbranch_scc1 L_s3done")
    g("s_cbranch_vccnz L_s3poll")
    g.lab("L_s3done")
def s3_compute(g, sj):
    E = V_ACC
    for st in (16, 8, 4):
        for r in range(st):
            src = S3 if st == 16 else E
            g(f"v_add_f32 v{E+r}, v{src+r}, v{src+st+r}")
    g.nop(2)
    g(f"v_permlane32_swap_b32 v{E}, v{E+2}")
    g(f"v_permlane32_swap_b32 v{E+1}, v{E+3}")
    g(f"v_add_f32 v{E}, v{E}, v{E+2}")
    g(f"v_add_f32 v{E+1}, v{E+1}, v{E+3}")
    g(f"v_mov_b32 v{E+2}, v{E}")
    g(f"v_mov_b32 v{E+3}, v{E+1}")
    g.nop(2)
    g(f"v_permlane16_swap_b32 v{E}, v{E+2}")
    g(f"v_permlane16_swap_b32 v{E+1}, v{E+3}")
    g(f"v_add_f32 v{E}, v{E}, v{E+2}")
    g(f"v_add_f32 v{E+1}, v{E+1}, v{E+3}")
    for sh in (4, 8):
        g.nop(1)
        g(dpp("v_add_f32", E, E, E, f"row_ror:{sh}"))
        g(dpp("v_add_f32", E+1, E+1, E+1, f"row_ror:{sh}"))
    g(f"v_cvt_pk_bf16_f32 v{E}, v{E}, v{E+1}")
    g("s_mov_b32 exec_lo, 15")
    g("s_mov_b32 exec_hi, 15")
    g(f"buffer_store_dword v{E}, v15, s[{SRD_X}:{SRD_X+3}], s{S_T0+5} offen")
    g("s_mov_b64 exec, -1")
def s3_out_addr(g, sj):
    srd(g, SRD_X, P_OUT, 2048)
    g(f"s_lshl_b32 s{S_T0+5}, s{sj}, 5")
    g(f"v_and_b32 v15, 3, v{V_LANE}")
    g("v_lshlrev_b32 v15, 3, v15")
    g(f"v_lshrrev_b32 v8, 5, v{V_LANE}")
    g("v_lshl_add_u32 v15, v8, 2, v15")

def helper(g):
    NS = g.kw.get("ns", 12); LEAD = g.kw.get("lead", 2)
    C, G_, GI, T = S_CNT, S_C, S_T0, S_T0 + 1
    g.lab("L_helper")
    g(f"s_mul_i32 s{S_CO}, s{S_H}, 0x880")
    g(f"s_add_u32 s{S_CO}, s{S_CO}, {CNTO}")
    g("v_mov_b32 v3, 0")
    g(f"v_lshlrev_b32 v4, 2, v{V_LANE}")
    g(f"s_lshl_b32 s{T}, s{S_S}, 19")
    g(f"s_add_u32 s{T}, s{T}, 1")
    g(f"v_lshl_add_u32 v5, v{V_LANE}, 15, s{T}")
    g(f"v_cmp_gt_u32 vcc, {NS}, v{V_LANE}")
    g("v_cndmask_b32 v5, 0, v5, vcc")
    g(f"ds_write_b32 v4, v5 offset:{L_SLOT}")
    g("s_waitcnt lgkmcnt(0)")
    srd(g, SRD_X, P_WS, WS_USE)
    g("s_mov_b64 exec, 1")
    g(f"s_cmp_lg_u32 s{S_S}, 0")
    g("s_cbranch_scc1 L_hnz")
    g(f"buffer_store_dword v3, off, s[{SRD_X}:{SRD_X+3}], s{S_CO} sc0 sc1")
    g.lab("L_hnz")
    if g.kw.get("pre", 1): g("s_barrier")
    g("s_waitcnt vmcnt(0)")
    g("s_barrier")
    if g.kw.get("pubbar", 1): g("s_barrier")
    g("s_barrier")
    g("s_barrier")
    g(f"s_mov_b32 s{C}, {NS - 2}")
    g.lab("L_hl")
    D1 = g.kw.get("d1", 0)
    for A, B in (((5, 5),) if D1 else ((5, 6), (6, 5))):
        g(f"s_cmp_lt_u32 s{C}, {NS}")
        g(f"s_cbranch_scc1 L_hgo{A}")
        g(f"s_lshl_b32 s{T}, s{C}, 2")
        g(f"s_add_u32 s{T}, s{T}, {L_SLOT - 4*LEAD}")
        g(f"s_mov_b32 s{S_SPIN}, {SPIN}")
        g.lab(f"L_hsp{A}")
        g(f"ds_read_b128 v[8:11], v3 offset:{L_SLOT + 128}")
        g(f"s_sub_u32 s{S_SPIN}, s{S_SPIN}, 1")
        g(f"s_cbranch_scc1 L_hgo{A}")
        g("s_waitcnt lgkmcnt(0)")
        g("v_max3_u32 v8, v8, v9, v10")
        g("v_max_u32 v8, v8, v11")
        g("s_nop 0")
        g(f"v_readfirstlane_b32 s{G_}, v8")
        g(f"s_cmp_lt_u32 s{G_}, s{T}")
        g(f"s_cbranch_scc1 L_hsp{A}")
        g.lab(f"L_hgo{A}")
        g(f"s_sub_u32 s{T}, s{C}, {NS}")
        g(f"s_cmp_lt_u32 s{T}, {31 - NS}")
        g(f"s_cselect_b32 s{SRD_X+2}, {WS_USE:#x}, 0")
        g(f"v_mov_b32 v{A}, 1")
        g(f"buffer_atomic_add v{A}, off, s[{SRD_X}:{SRD_X+3}], s{S_CO} sc0 sc1")
        g(f"s_lshl_b32 s{T}, s{C}, 2")
        g(f"v_mov_b32 v4, s{T}")
        g(f"s_waitcnt vmcnt({0 if D1 else 1})")
        g(f"v_readfirstlane_b32 s{G_}, v{B}")
        g(f"s_lshr_b32 s{GI}, s{G_}, 5")
        g(f"s_add_u32 s{GI}, s{GI}, {NS}")
        g(f"s_and_b32 s{G_}, s{G_}, 31")
        g(f"s_sub_u32 s{T}, s{C}, {0 if D1 else 1}")
        g(f"s_cmp_lt_u32 s{T}, {NS}")
        g(f"s_cselect_b32 s{GI}, s{T}, s{GI}")
        g(f"s_cselect_b32 s{G_}, s{S_S}, s{G_}")
        g(f"s_cmp_eq_u32 s{T}, 31")
        g(f"s_cselect_b32 s{GI}, 16, s{GI}")
        g(f"s_lshl_b32 s{G_}, s{G_}, 19")
        g(f"s_lshl_b32 s{T}, s{GI}, 15")
        g(f"s_add_u32 s{G_}, s{G_}, s{T}")
        g(f"s_add_u32 s{G_}, s{G_}, 1")
        g(f"s_cmp_ge_u32 s{GI}, 16")
        g(f"s_cselect_b32 s{G_}, 2, s{G_}")
        g(f"v_mov_b32 v7, s{G_}")
        g(f"ds_write_b32 v4, v7 offset:{L_SLOT - (0 if D1 else 4)}")
        g("s_cbranch_scc1 L_hend")
        g(f"s_add_u32 s{C}, s{C}, 1")
    g("s_branch L_hl")
    g.lab("L_hend")
    g("s_waitcnt lgkmcnt(0)")
    g("s_barrier")
    g("s_waitcnt vmcnt(0)")
    g("s_endpgm")

def gen(**kw):
    g = G(**kw)
    NB = g.nbuf
    k = NAME + "_kernel"
    hw = g.kw.get("hw", 0)
    g.raw(f"; @launch grid=(256,1,1) block=({320 if hw else 256},1,1) lds={LDS_BYTES + (256 if hw else 0)}")
    g.raw('.amdgcn_target "amdgcn-amd-amdhsa--gfx950"')
    g.raw(".text")
    g.raw(f".globl {k}")
    g.raw(".p2align 8")
    g.raw(f".type {k},@function")
    g.lab(k)
    g("s_cmp_ge_u32 s2, 256")
    g(f"s_cbranch_scc1 L_end")
    g("s_load_dwordx16 s[40:55], s[0:1], 0")
    g("s_load_dwordx8 s[56:63], s[0:1], 64")
    g("s_load_dwordx2 s[64:65], s[0:1], 96")
    stamp(g, 0)
    g("v_lshrrev_b32 v1, 6, v0")
    g(f"v_and_b32 v{V_LANE}, 63, v0")
    dyn = g.kw.get("dyn", 0)
    g(f"v_readfirstlane_b32 s{S_W}, v1")
    if g.kw.get("spread", dyn):
        g(f"s_lshr_b32 s{S_H}, s2, 5")
        g(f"s_and_b32 s{S_S}, s2, 7")
        g(f"s_lshl_b32 s{S_S}, s{S_S}, 1")
        g(f"s_bfe_u32 s{S_T0}, s2, 0x10003")
        g(f"s_add_u32 s{S_S}, s{S_S}, s{S_T0}")
        g(f"s_and_b32 s{S_T0}, s2, 16")
        g(f"s_add_u32 s{S_S}, s{S_S}, s{S_T0}")
    else:
        g(f"s_and_b32 s{S_H}, s2, 7")
        g(f"s_lshr_b32 s{S_S}, s2, 3")
    if hw:
        g(f"s_cmp_eq_u32 s{S_W}, 4")
        g("s_cbranch_scc1 L_helper")
        g(f"v_lshlrev_b32 v1, 2, v1")
        g(f"v_add_u32 v1, {L_SLOT + 128}, v1")
        g(f"s_mov_b32 s{S_VAL}, 1")
        g(f"s_mov_b32 s{S_VAL+1}, 1")
        g(f"s_mov_b32 s{S_CO}, {L_SLOT + 8}")
        if g.kw.get("prio", 0): g(f"s_setprio {g.kw['prio']}")
    g(f"s_mov_b32 s{S_PLO}, 0x05040100")
    g(f"s_mov_b32 s{S_PHI}, 0x07060302")
    g(f"s_mov_b32 s{S_SCALE}, 0x3db504f3")
    g(f"s_mov_b32 s{S_LOG2E}, 0x3fb8aa3b")
    qproj_pre(g)
    kv_offsets(g)
    g(f"s_lshl_b32 s{S_T0+2}, s{S_H}, 24")
    g(f"s_lshl_b32 s{S_T0+1}, s{S_W}, 13")
    g(f"s_add_u32 s{S_T0+2}, s{S_T0+2}, s{S_T0+1}")
    g(f"s_lshl_b32 s{S_T0+1}, s{S_S}, 15")
    g(f"s_add_u32 s{S_KOFF}, s{S_T0+2}, s{S_T0+1}")
    g(f"s_add_u32 s{S_KOFF}, s{S_KOFF}, {15 << 20}")
    g(f"s_mov_b32 s{S_VOFF}, s{S_KOFF}")
    if dyn == 3:
        g(f"s_add_u32 s{S_HB}, s{S_T0+2}, {3 << 15}")
        g(f"s_sub_u32 s{S_C}, s{S_S}, 64")
        g(f"v_mov_b32 v{V_CL}, s{S_C}")
        g(f"v_add_u32 v{V_CL+1}, 32, v{V_CL}")
        g(f"s_lshl_b32 s{S_CO}, s{S_H}, 2")
        g(f"s_add_u32 s{S_CO}, s{S_CO}, s{S_W}")
        g(f"s_mul_i32 s{S_CO}, s{S_CO}, 0x180")
        g(f"s_add_u32 s{S_CO}, s{S_CO}, {CNTO}")
        g(f"s_mov_b32 s{S_VAL+1}, 1")
        g(f"s_lshl_b32 s{S_T0+1}, s{S_S}, 19")
    elif dyn == 2:
        g(f"s_lshl_b32 s{S_HB}, s{S_H}, 24")
        g(f"s_add_u32 s{S_HB}, s{S_HB}, {12 << 13}")
        g(f"s_sub_u32 s{S_C}, s{S_W}, 8")
        g(f"s_lshl_b32 s{S_C}, s{S_C}, 5")
        g(f"s_add_u32 s{S_C}, s{S_C}, s{S_S}")
        g(f"v_mov_b32 v{V_CL}, s{S_C}")
        g(f"v_add_u32 v{V_CL+1}, 128, v{V_CL}")
        g(f"s_mul_i32 s{S_CO}, s{S_H}, 0x880")
        g(f"s_add_u32 s{S_CO}, s{S_CO}, {CNTO}")
        g(f"s_mov_b32 s{S_VAL+1}, 1")
        g(f"s_lshl_b32 s{S_T0+1}, s{S_S}, 19")
    elif dyn:
        g(f"s_lshl_b32 s{S_HB}, s{S_H}, 24")
        g(f"s_add_u32 s{S_HB}, s{S_HB}, {NSTAT << 13}")
        g(f"s_lshl_b32 s{S_C}, s{S_S}, 2")
        g(f"s_add_u32 s{S_C}, s{S_C}, s{S_W}")
        g(f"s_sub_u32 s{S_C}, s{S_C}, {NSTAT - 128}")
        g(f"v_mov_b32 v{V_CL}, s{S_C}")
        g(f"v_add_u32 v{V_CL+1}, 128, v{V_CL}")
        g(f"s_mul_i32 s{S_CO}, s{S_H}, 0x880")
        g(f"s_add_u32 s{S_CO}, s{S_CO}, {CNTO}")
        g(f"s_mov_b32 s{S_VAL+1}, 1")
        g(f"s_lshl_b32 s{S_T0+1}, s{S_S}, 15")
    elif g.kw.get("rot"):
        g(f"s_add_u32 s{S_T0+1}, s{S_S}, {g.kw['rot']}")
        g(f"s_and_b32 s{S_T0+1}, s{S_T0+1}, 31")
        g(f"s_lshl_b32 s{S_T0+1}, s{S_T0+1}, 19")
    else:
        g(f"s_lshl_b32 s{S_T0+1}, s{S_S}, 19")
    if hw: g(f"s_mov_b32 s{S_HB}, s{S_T0+2}")
    g(f"s_add_u32 s{S_A1}, s{S_T0+2}, s{S_T0+1}")
    g("s_waitcnt lgkmcnt(0)")
    stamp(g, 1)
    srd(g, SRD_WS, P_WS, WS_USE)
    if dyn:
        if dyn == 3:
            g(f"s_cmp_lg_u32 s{S_S}, 0")
        else:
            g(f"s_or_b32 s{S_T0+1}, s{S_S}, s{S_W}")
            g(f"s_cmp_lg_u32 s{S_T0+1}, 0")
        g("s_cbranch_scc1 L_nocz")
        g("v_mov_b32 v15, 0")
        g("s_mov_b64 exec, 1")
        g(f"buffer_store_dword v15, off, s[{SRD_WS}:{SRD_WS+3}], s{S_CO} sc1")
        g("s_mov_b64 exec, -1")
        g.lab("L_nocz")
    if g.kw.get("touch"):
        srd(g, SRD_K, P_AK, 0x8000000)
        srd(g, SRD_V, P_AV, 0x8000000)
        g("s_mov_b64 exec, 1")
        g(f"buffer_load_dword v{V_X}, off, s[{SRD_K}:{SRD_K+3}], s{S_A1}")
        g(f"buffer_load_dword v{V_X+1}, off, s[{SRD_V}:{SRD_V+3}], s{S_A1}")
        srd(g, SRD_K, P_BK, 0x8000000)
        srd(g, SRD_V, P_BV, 0x8000000)
        g(f"buffer_load_dword v{V_X+2}, off, s[{SRD_K}:{SRD_K+3}], s{S_KOFF}")
        g(f"buffer_load_dword v{V_X+3}, off, s[{SRD_V}:{SRD_V+3}], s{S_KOFF}")
        g("s_mov_b64 exec, -1")
    qproj_issue(g)
    g(f"buffer_load_dword v{V_TAG}, off, s[{SRD_WS}:{SRD_WS+3}], 0 {g.kw.get('epol', 'sc1')}")
    srd(g, SRD_K, P_BK, 0x8000000)
    srd(g, SRD_V, P_BV, 0x8000000)
    woe = g.kw.get("woearly", 1)
    wopos = g.kw.get("wopos", 1)
    def group(i):
        if woe:
            if i == wopos: return wo_early(g)
            if i > wopos: i -= 1
        b = i // 2
        if i % 2 == 0:
            issue_k(g, b)
            if i == 0:
                g(f"s_mov_b32 s{SRD_K}, s{P_AK}"); g(f"s_mov_b32 s{SRD_K+1}, s{P_AK+1}")
                g(f"s_mov_b32 s{S_KOFF}, s{S_A1}")
            else: g(f"s_add_u32 s{S_KOFF}, s{S_KOFF}, 0x8000")
        else:
            issue_v(g, b)
            if i == 1:
                g(f"s_mov_b32 s{SRD_V}, s{P_AV}"); g(f"s_mov_b32 s{SRD_V+1}, s{P_AV+1}")
                g(f"s_mov_b32 s{S_VOFF}, s{S_A1}")
            else: g(f"s_add_u32 s{S_VOFF}, s{S_VOFF}, 0x8000")
    pre = g.kw.get("pre", 1)
    post = g.kw.get("post", 1)
    NG = 2 * NB + woe
    if pre: g("s_barrier")
    for i in range(pre): group(i)
    qproj_addr(g)
    lds_addrs(g)
    for i in range(4): g(f"s_mov_b32 s{S_SEL+i}, {0x07060500 + i:#x}")
    g(f"s_mov_b32 s{S_SELC}, 0x0c0c0400")
    g(f"s_waitcnt vmcnt({8*pre})")
    stamp(g, 2)
    g(f"v_add_u32 v{V_TAG}, 0x9e3779b9, v{V_TAG}")
    qproj_compute(g)
    stamp(g, 3)
    for i in range(pre, pre + post): group(i)
    init_state(g)
    first = pre + post
    if g.kw.get("noq") == 2:
        for i in range(first, NG): group(i)
        g(f"s_branch L_qok{NG-1}")
    for i in range(first, NG):
        qpoll_issue(g)
        group(i)
        g("s_waitcnt vmcnt(8)")
        qpoll_check(g)
        g(f"s_cbranch_vccz L_qok{i}")
    g(f"s_mov_b32 s{S_SPIN}, {SPIN}")
    g.lab("L_qpoll")
    qpoll_issue(g)
    g(f"s_sub_u32 s{S_SPIN}, s{S_SPIN}, 1")
    g("s_waitcnt vmcnt(0)")
    qpoll_check(g)
    g(f"s_cmp_eq_u32 s{S_SPIN}, 0")
    g(f"s_cbranch_scc1 L_qok{NG-1}")
    g("s_cbranch_vccnz L_qpoll")
    if NG - first >= 2:
        g(f"s_branch L_qok{NG-1}")
    for i in range(first, NG - 1):
        g.lab(f"L_qok{i}")
        group(i + 1)
    g.lab(f"L_qok{NG-1}")
    stamp(g, 4)
    g("v_lshlrev_b32 v7, 2, v0")
    g(f"ds_write_b32 v7, v{QP} offset:{L_Q}")
    g(f"ds_write_b32 v7, v{QP+2} offset:{L_Q+1024}")
    g("s_waitcnt lgkmcnt(0)")
    g("s_barrier")
    load_q(g, 1)
    if dyn: srd(g, SRD_X, P_WS, WS_USE)
    g(f"s_mov_b32 s{S_CNT}, {NB-1}")
    g("s_waitcnt lgkmcnt(0)")
    stamp(g, 5)
    process(g, 0, False)
    load_q(g, 0)
    wg_combine_addrs(g, 1)
    save_partials(g, 1)
    g("s_waitcnt lgkmcnt(0)")
    g("s_barrier")
    wg_combine(g, 1)
    init_state(g)
    g(f"s_sub_u32 s{S_T0}, s{S_T0}, {1 << 19}")
    g(f"s_sub_u32 s{S_T0+1}, s{S_T0+1}, {1 << 14}")
    s2_addrs(g)
    s2_out_addr(g)
    wo_prepermute(g, V_B0 + 32 * NB)
    order = list(range(1, NB)) + [0]
    if g.kw.get("peel", 0):
        for b in order: process(g, b, True, 2)
    g.lab("L_loop")
    for b in order:
        process(g, b, True)
        if dyn or hw: continue
        if b == 16 % NB:
            g(f"s_cmp_eq_u32 s{S_CNT}, {16 + (0 if g.kw.get('pl') else NB)}")
            if b == order[-1]:
                g("s_cbranch_scc0 L_loop")
            else:
                g("s_cbranch_scc1 L_loopend")
    if dyn or hw or 16 % NB != order[-1]:
        g("s_branch L_loop")
    if g.kw.get("pl"):
        assert NB == 2
        process(g, 1, True, 0, 1)
        process(g, 0, True, 0, 2)
    g.lab("L_loopend")
    stamp(g, 6)
    cut = g.kw.get("cut", 0)
    if cut == 1: g("s_branch L_fin")
    save_partials(g, 0)
    g("s_waitcnt lgkmcnt(0)")
    g("s_barrier")
    wg_combine(g, 0)
    stamp(g, 7)
    if cut == 2: g("s_branch L_fin")
    s2_poll(g)
    stamp(g, 8)
    s2_compute(g)
    s2_project(g, V_B0 + 32 * (NB if woe else 17 % NB))
    stamp(g, 9)
    if cut == 3: g("s_branch L_fin")
    red = g.kw.get("red", 0)
    g(f"s_and_b32 s{S_T0}, s{S_S}, {17 if red else 3}")
    g(f"s_or_b32 s{S_T0}, s{S_T0}, s{S_W}")
    g(f"s_cmp_lg_u32 s{S_T0}, 0")
    g("s_cbranch_scc1 L_fin")
    g(f"s_lshl_b32 s{S_CNT}, s{S_H}, 2")
    g(f"s_bfe_u32 s{S_T0}, s{S_S}, 0x20002")
    g(f"s_add_u32 s{S_CNT}, s{S_CNT}, s{S_T0}")
    if red: g(f"s_bfe_u32 s{S_T0}, s{S_S}, 0x10001")
    else: g(f"s_lshr_b32 s{S_T0}, s{S_S}, 4")
    g(f"s_lshl_b32 s{S_T0}, s{S_T0}, 5")
    g(f"s_add_u32 s{S_CNT}, s{S_CNT}, s{S_T0}")
    s3_addrs(g, S_CNT)
    s3_out_addr(g, S_CNT)
    s3_poll(g)
    stamp(g, 10)
    s3_compute(g, S_CNT)
    g(f"s_cmp_lg_u32 s{S_CNT}, 0")
    g("s_cbranch_scc1 L_fin")
    g("s_mov_b64 exec, 1")
    g(f"buffer_store_dword v{V_TAG}, off, s[{SRD_WS}:{SRD_WS+3}], 0 sc1")
    g("s_mov_b64 exec, -1")
    g.lab("L_fin")
    stamp(g, 11)
    stamp_flush(g, 12)
    g.lab("L_end")
    g("s_endpgm")
    if hw:
        g.L += g.late
        helper(g)
    g.raw('.section .rodata,"a"')
    nv = V_B0 + 32 * (NB + woe)
    g.raw(".p2align 6")
    g.raw(f".amdhsa_kernel {k}")
    g.raw(f"  .amdhsa_next_free_vgpr {nv + 32*NB}")
    g.raw(f"  .amdhsa_next_free_sgpr 102")
    g.raw(f"  .amdhsa_accum_offset {nv}")
    g.raw("  .amdhsa_group_segment_fixed_size 0")
    g.raw("  .amdhsa_kernarg_size 104")
    g.raw("  .amdhsa_user_sgpr_count 2")
    g.raw("  .amdhsa_user_sgpr_kernarg_segment_ptr 1")
    g.raw("  .amdhsa_system_sgpr_workgroup_id_x 1")
    g.raw(".end_amdhsa_kernel")
    return g.text()

if __name__ == "__main__":
    import json
    for a in sys.argv[1:]:
        name, kw = a.split("=", 1)
        open(name, "w").write(gen(**eval("dict(" + kw + ")")))
```
